```python
import torch

def _softmax(x, axis=-1):
    return torch.softmax(x, dim=axis)
def _gelu(x):
    return torch.nn.functional.gelu(x, approximate="tanh")
def _silu(x):
    return torch.nn.functional.silu(x)
def _sigmoid(x):
    return torch.sigmoid(x)
def _layernorm(x, axis=-1, eps=1e-5):
    m = x.mean(dim=axis, keepdim=True)
    v = x.var(dim=axis, keepdim=True, unbiased=False)
    return (x - m) / torch.sqrt(v + eps)
def _scatter_add(tgt, idx, src, axis=0):
    return tgt.clone().index_add_(axis, idx, src)
def _segment_sum(src, seg, n):
    out = torch.zeros((n,) + src.shape[1:], dtype=src.dtype)
    return out.index_add_(0, seg, src)
def _pad(x, pw):
    flat = tuple(v for pair in reversed(pw) for v in pair)
    return torch.nn.functional.pad(x, flat)

kernel_name = 'sequential_preLN__grouped_kv_mqa__dense_activation_silu__prompt'

def setup_inputs():

    _w = (lambda a: (lambda t: t.to(torch.bfloat16) if t.is_floating_point() else t)(torch.as_tensor(a)))
    def _A_setup():
        B, S, D, H = 1, 2048, 576, 32
        Dh = D // H
        return {
            "x": _w((lambda *s: torch.randn(*s, dtype=torch.bfloat16) * 0.05)(B, S, D)),
            "wq": _w((lambda *s: torch.randn(*s, dtype=torch.bfloat16) * 0.05)(D, H * Dh)),
            "wk": _w((lambda *s: torch.randn(*s, dtype=torch.bfloat16) * 0.05)(D, Dh)),
            "wv": _w((lambda *s: torch.randn(*s, dtype=torch.bfloat16) * 0.05)(D, Dh)),
            "wo": _w((lambda *s: torch.randn(*s, dtype=torch.bfloat16) * 0.05)(H * Dh, D)),
        }
    _A_in = _A_setup()

    def _B_setup():
        B, S, D, F = 1, 2048, 576, 4608
        return {
            "x": _w((lambda *s: torch.randn(*s, dtype=torch.bfloat16) * 0.05)(B, S, D)),
            "w1": _w((lambda *s: torch.randn(*s, dtype=torch.bfloat16) * 1.6)(D, F) * (D ** -0.5)),
            "w2": _w((lambda *s: torch.randn(*s, dtype=torch.bfloat16) * 0.2)(F, D) * (F ** -0.5)),
        }
    _B_in = _B_setup()

    return {
        "A_x": _A_in["x"],
        "A_wq": _A_in["wq"],
        "A_wk": _A_in["wk"],
        "A_wv": _A_in["wv"],
        "A_wo": _A_in["wo"],
        "B_x": _B_in["x"],
        "B_w1": _B_in["w1"],
        "B_w2": _B_in["w2"],
    }

def reference(A_x, A_wq, A_wk, A_wv, A_wo, B_x, B_w1, B_w2):
    def _A_ref(x, wq, wk, wv, wo):
        B, S, D = x.shape
        H = 32
        Dh = D // H
        q = (lambda x, *d: x.permute(*d))((x @ wq).reshape(B, S, H, Dh), 0, 2, 1, 3)
        k = x @ wk
        v = x @ wv
        scores = torch.einsum("bhqd,bkd->bhqk", q, k) * (Dh ** -0.5)
        p = _softmax(scores, axis=-1)
        o = torch.einsum("bhqk,bkd->bhqd", p, v)
        return (lambda x, *d: x.permute(*d))(o, 0, 2, 1, 3).reshape(B, S, H * Dh) @ wo

    def _B_ref(x, w1, w2):
        h = torch.einsum("bsd,df->bsf", x, w1)
        h = _silu(h)
        out = torch.einsum("bsf,fd->bsd", h, w2)
        return out

    x = A_x
    h = x + _A_ref(_layernorm(x, axis=-1), A_wq, A_wk, A_wv, A_wo)
    h2 = h + _B_ref(_layernorm(h, axis=-1), B_w1, B_w2)
    return h2
```

```python
import re

TRANS = ("v_exp_", "v_log_", "v_rcp_", "v_rsq_", "v_sqrt_", "v_sin_", "v_cos_")

def regs_of(tok):
    tok = tok.strip()
    tok = tok.lstrip("-").strip("|")
    m = re.fullmatch(r"([vas])\[(\d+):(\d+)\]", tok)
    if m:
        return [f"{m.group(1)}{i}" for i in range(int(m.group(2)), int(m.group(3)) + 1)]
    m = re.fullmatch(r"([vas])(\d+)", tok)
    if m:
        return [tok]
    if tok in ("vcc", "vcc_lo", "vcc_hi"): return ["vcc"]
    if tok in ("exec", "exec_lo", "exec_hi"): return ["exec"]
    if tok == "m0": return ["m0"]
    return []

class Ins:
    __slots__ = ("text", "op", "kind", "w", "r", "srcc", "passes", "dpp", "wide_store", "lds_dma", "states", "ab")
    def __init__(self, text):
        self.text = text
        t = text.split(";")[0].strip()
        parts = t.split(None, 1)
        op = parts[0]; self.op = op
        rest = parts[1] if len(parts) > 1 else ""
        ops = [o.strip() for o in rest.split(",")] if rest else []
        mods = ""
        if ops:
            l = ops[-1].split(None, 1)
            ops[-1] = l[0]
            if len(l) > 1: mods = l[1]
        self.dpp = any(k in t for k in ("quad_perm", "row_shr", "row_shl", "row_ror", "row_mirror", "row_half_mirror", "row_bcast", "row_newbcast", "wave_"))
        if self.dpp or "op_sel" in t or "neg_lo" in t or "neg_hi" in t:
            t2 = re.split(r"\s(quad_perm|row_|wave_|op_sel|neg_lo|neg_hi)", rest)[0]
            ops = [o.strip() for o in t2.split(",")]
            ops[-1] = ops[-1].split()[0]
        self.w = []; self.r = []; self.srcc = []; self.ab = []; self.passes = 0
        self.wide_store = []; self.lds_dma = False; self.states = 1
        R = lambda lst: [x for o in lst for x in regs_of(o)]
        if op.startswith("v_mfma"):
            self.kind = "mfma"
            self.passes = 8 if "32x32" in op else 4
            self.w = R(ops[:1]); self.ab = R(ops[1:3]); self.srcc = R(ops[3:4]); self.r = self.ab + self.srcc
        elif op.startswith("v_"):
            self.kind = "trans" if op.startswith(TRANS) else ("dot" if op.startswith("v_dot") else "valu")
            if op.startswith("v_permlane"):
                self.kind = "perm"; self.w = R(ops[:2]); self.r = R(ops[:2])
            elif op.startswith("v_cmp"):
                self.w = R(ops[:1]); self.r = R(ops[1:])
                if op.startswith("v_cmpx"): self.w.append("exec")
            elif op.startswith(("v_readfirstlane", "v_readlane")):
                self.kind = "rdlane"; self.w = R(ops[:1]); self.r = R(ops[1:])
            elif "_co_" in op:
                self.w = R(ops[:2]); self.r = R(ops[2:])
            else:
                self.w = R(ops[:1]); self.r = R(ops[1:])
                if op.startswith(("v_fmac", "v_dot2c", "v_mac")) or self.dpp: self.r += self.w
                if op.startswith("v_cndmask") and len(ops) == 3: self.r.append("vcc")
            if self.kind == "dot":
                self.srcc = R(ops[3:4]) if len(ops) > 3 else list(self.w)
                self.ab = R(ops[1:3])
        elif op.startswith(("buffer_", "global_")):
            self.kind = "vmem"
            lds = re.search(r"\blds\b", mods) is not None
            if "store" in op or "atomic" in op:
                self.r = R(ops)
                if "x3" in op or "x4" in op:
                    self.wide_store = R(ops[:1]) if op.startswith("buffer_") else R(ops[1:2])
            elif lds:
                self.lds_dma = True; self.r = R(ops) + ["m0"]
            elif op in ("buffer_inv", "buffer_wbl2"):
                pass
            else:
                self.w = R(ops[:1]); self.r = R(ops[1:])
        elif op.startswith("ds_"):
            self.kind = "ds"
            if "write" in op or ("add" in op and "rtn" not in op) or ("max" in op and "rtn" not in op): self.r = R(ops)
            else: self.w = R(ops[:1]); self.r = R(ops[1:])
        elif op == "s_nop":
            self.kind = "nop"; self.states = int(ops[0]) + 1
        elif op.startswith("s_"):
            self.kind = "salu"
            if op.startswith(("s_cmp", "s_waitcnt", "s_barrier", "s_cbranch", "s_branch", "s_endpgm", "s_setprio", "s_sleep")):
                self.r = R(ops)
            else:
                self.w = R(ops[:1]); self.r = R(ops[1:])
                if "saveexec" in op: self.w.append("exec")
        else:
            raise ValueError("unknown instr " + text)

VALUS = ("valu", "trans", "dot", "perm", "rdlane")

class Gen:
    def __init__(self):
        self.lines = []
        self.st = {}
        self.saved = {}
        self.nops = 0
        self.vmq = []; self.lgq = []
        self.log_nops = False
        self.labelstate = {}
    def raw(self, s): self.lines.append(s)
    def comment(self, s): self.lines.append("    ; " + s)
    def need(self, ins):
        st = self.st; n = 0
        def chk(key, req):
            nonlocal n
            if key in st and st[key] < req: n = max(n, req - st[key])
        k = ins.kind
        for r in ins.r:
            if k == "mfma":
                chk(("valu_w", r), 2); chk(("dot_w", r), 3)
            if k in VALUS:
                if k != "trans": chk(("trans_w", r), 1)
                chk(("valu_sw", r), 2)
                if ins.dpp or k == "perm": chk(("valu_w", r), 2)
                if k == "rdlane": chk(("valu_w", r), 1)
            if k in VALUS or k in ("vmem", "ds"):
                if not (k == "dot" and r in ins.srcc and r not in ins.ab and st.get(("dotop", r)) == ins.op):
                    chk(("dot_w", r), 3)
                for p, req in ((8, 12), (4, 8)): chk((f"mf{p}_w", r), req)
            if k == "vmem": chk(("valu_sw", r), 5)
            if ins.lds_dma and r == "m0": chk(("salu_w", "m0"), 1)
        if k == "mfma":
            for r in ins.ab:
                chk(("mf8_w", r), 12); chk(("mf4_w", r), 8)
            for r in ins.srcc:
                for p, req in ((8, 10), (4, 6)):
                    key = (f"mf{p}_w", r)
                    if key in st and st[key] < req:
                        if not (st.get(("mfD", r)) == tuple(ins.srcc) and ins.passes == p):
                            n = max(n, req - st[key])
            chk(("valu_sw", "exec"), 4)
        if ins.dpp: chk(("valu_sw", "exec"), 5)
        if k in ("perm", "rdlane"): chk(("valu_sw", "exec"), 4)
        for r in ins.w:
            if k in VALUS or k in ("vmem", "ds"):
                for p, req in ((8, 12), (4, 8)): chk((f"mf{p}_w", r), req)
                if k in VALUS:
                    chk(("mf8_c", r), 7); chk(("mf4_c", r), 3); chk(("wst", r), 2)
                    if not (k == "dot" and st.get(("dotop", r)) == ins.op and r in ins.srcc): chk(("dot_w", r), 3)
                else:
                    chk(("wst", r), 1)
            if k == "mfma":
                chk(("wst", r), 2)
        return n
    def advance(self, n):
        st = self.st
        for key in list(st.keys()):
            if key[0] in ("mfD", "dotop"): continue
            st[key] += n
            if st[key] > 24: del st[key]
    def apply(self, ins):
        self.advance(ins.states)
        st = self.st; k = ins.kind
        if k == "mfma":
            a = st.get(("lastmf", ""))
            if a is not None and a < 8: self.advance(8 - a)
            st.pop(("lastmf", ""), None)
            if "32x32x16" in ins.op: st[("lastmf", "")] = 0
        for r in ins.w:
            if k == "mfma":
                st[(f"mf{ins.passes}_w", r)] = 0; st[("mfD", r)] = tuple(ins.w)
            elif k in VALUS:
                if r[0] in "va" and r != "vcc":
                    st[("valu_w", r)] = 0
                    if k == "trans": st[("trans_w", r)] = 0
                    if k == "dot": st[("dot_w", r)] = 0; st[("dotop", r)] = ins.op
                else:
                    st[("valu_sw", r)] = 0
            elif k == "salu":
                st[("salu_w", r)] = 0
        if k == "mfma":
            for r in ins.srcc: st[(f"mf{ins.passes}_c", r)] = 0
        for r in ins.wide_store: st[("wst", r)] = 0
    def e(self, text, tag=None):
        for line in text.strip().split("\n"):
            line = line.strip()
            if not line or line.startswith(";"): continue
            ins = Ins(line)
            n = self.need(ins)
            while n > 0:
                c = min(n, 16)
                self.lines.append(f"    s_nop {c-1}")
                self.advance(c); n -= c; self.nops += 1
                if self.log_nops: print("NOP", c, "before", line)
            self.lines.append("    " + line)
            self.apply(ins)
            if ins.kind == "vmem" and ins.op not in ("buffer_inv", "buffer_wbl2"): self.vmq.append(tag)
            if ins.kind == "ds": self.lgq.append(tag)
            if ins.op.startswith(("s_cbranch", "s_branch")):
                lab = line.split()[1]
                if lab in self.labelstate:
                    pass
                else:
                    self.saved.setdefault(lab, []).append(dict(self.st))
                if ins.op == "s_branch": self.st = {}
            if ins.op == "s_endpgm": self.st = {}
    def label(self, lab, align=None):
        if align: self.lines.append(f".p2align {align}")
        self.lines.append(lab + ":")
        self.st.pop(("lastmf", ""), None)
        for s in self.saved.pop(lab, []):
            for key, v in s.items():
                if key[0] == "lastmf": continue
                if key[0] in ("mfD", "dotop"):
                    if self.st.get(key) != v: self.st[key] = None
                else:
                    self.st[key] = min(v, self.st.get(key, 99))
        self.labelstate[lab] = True
    def drain(self):
        m = 0
        for key, v in self.st.items():
            if key[0] in ("mfD", "dotop", "lastmf"): continue
            req = {"mf8_w": 12, "mf4_w": 8, "mf8_c": 7, "mf4_c": 3, "valu_sw": 5, "dot_w": 3}.get(key[0], 2)
            m = max(m, req - v)
        if m > 0: self.e(f"s_nop {m-1}")
    def _wait(self, q, tag, mx, name):
        idx = [i for i, t in enumerate(q) if t == tag]
        if not idx: return None
        n = len(q) - 1 - idx[-1]
        del q[:idx[-1] + 1]
        return min(n, mx)
    def wait(self, vm=None, lg=None):
        parts = []
        if vm is not None:
            n = self._wait(self.vmq, vm, 63, "vm")
            if n is not None: parts.append(f"vmcnt({n})")
        if lg is not None:
            n = self._wait(self.lgq, lg, 15, "lg")
            if n is not None: parts.append(f"lgkmcnt({n})")
        if parts: self.e("s_waitcnt " + " ".join(parts))
    def wait_all(self, vm=True, lg=True):
        parts = []
        if vm: parts.append("vmcnt(0)"); self.vmq = []
        if lg: parts.append("lgkmcnt(0)"); self.lgq = []
        self.e("s_waitcnt " + " ".join(parts))
    def text(self): return "\n".join(self.lines) + "\n"

def vr(b, n=4, p="v"): return f"{p}[{b}:{b+n-1}]"
def ar(b, n=4): return vr(b, n, "a")
```

```python
from asmgen import *
import math, struct
NAME = "sequential_preLN__grouped_kv_mqa__dense_activation_silu__prompt"
WS_Q = 0x0
WS_KV = 0x300000
WS_KL = 0x330000
WS_KN = 0x338000
WS_MX = 0x339000
WS_MH = 0x33C000
WS_SS = 0x340000
WS_O = 0x400000
WS_HC = 0x700000
WS_WO = 0xA00000
WO_J = 86016
WS_W = 0xB00000
WS_P = 0x1600000
WS_SIZE = 268435456
QREC = 1536
def f2u(x): return struct.unpack("<I", struct.pack("<f", x))[0]
def fhex(x): return "0x%08x" % f2u(x)
CQ = (18 ** -0.5) * math.log2(math.e)

def srd(g, s, lo, size):
    g.e(f"""
    s_mov_b32 s{s}, s{lo}
    s_mov_b32 s{s+1}, s{lo+1}
    s_mov_b32 s{s+2}, {size}
    s_mov_b32 s{s+3}, 0x00020000""")

def kernel_head(g, name, nwg):
    g.raw(f".globl {name}\n.p2align 8\n.type {name},@function\n{name}:")
    g.st = {}; g.vmq = []; g.lgq = []
    g.e(f"s_cmp_ge_u32 s2, {nwg}")
    g.e(f"s_cbranch_scc1 {name}_end")

def kernel_tail(g, name):
    g.label(f"{name}_end")
    g.e("s_endpgm")

def kdesc(name, nv=512, acc=256):
    return f""".p2align 6
.amdhsa_kernel {name}
  .amdhsa_next_free_vgpr {nv}
  .amdhsa_next_free_sgpr 102
  .amdhsa_accum_offset {acc}
  .amdhsa_group_segment_fixed_size 0
  .amdhsa_kernarg_size 88
  .amdhsa_user_sgpr_count 2
  .amdhsa_user_sgpr_kernarg_segment_ptr 1
  .amdhsa_system_sgpr_workgroup_id_x 1
.end_amdhsa_kernel
"""

def map_imajor(g, si, sj, st):
    g.e(f"s_and_b32 s{si}, s2, 31")
    g.e(f"s_lshr_b32 s{sj}, s2, 5")

WS_DBG = 0x8000000
def dump(g, regs, srdb=36, tmp=255, end=True):
    e = g.e
    e("s_waitcnt vmcnt(0) lgkmcnt(0)")
    e("s_nop 15")
    e(f"v_and_b32 v{tmp}, 63, v0")
    e(f"v_lshrrev_b32 v{tmp-1}, 6, v0")
    e(f"v_lshl_add_u32 v{tmp-1}, s2, 2, v{tmp-1}")
    e(f"v_mul_u32_u24 v{tmp-1}, {256*len(regs)}, v{tmp-1}")
    e(f"v_lshl_add_u32 v{tmp}, v{tmp}, 2, v{tmp-1}")
    e(f"v_add_u32 v{tmp}, {WS_DBG}, v{tmp}")
    for k, r in enumerate(regs):
        e(f"buffer_store_dword {r}, v{tmp}, s[{srdb}:{srdb+3}], 0 offen")
        e(f"v_add_u32 v{tmp}, 256, v{tmp}")
    if end: e("s_endpgm")

import os
PROF = os.environ.get("PROF")
def stamp(g, kid, idx, srdb, vt, wreg=16):
    if not PROF: return
    e = g.e
    e("s_memtime s[0:1]")
    e("s_memrealtime s[12:13]")
    if idx == 0:
        e("s_lshl_b32 s3, s2, 2")
        e(f"s_add_u32 s3, s3, s{wreg}")
        e("s_lshl_b32 s3, s3, 7")
        e(f"s_add_u32 s3, s3, {WS_DBG + kid*0x100000}")
    e("s_waitcnt lgkmcnt(0)"); g.lgq = []
    e(f"v_mov_b32 v{vt}, s0")
    e(f"v_mov_b32 v{vt+1}, s12")
    g.raw(f"    buffer_store_dwordx2 v[{vt}:{vt+1}], off, s[{srdb}:{srdb+3}], s3 offset:{8*idx}")
```

```python
from common import *
XI, ST, WQ, KVI = 0, 36864, 37120, 120064
K1_LDS = KVI + 27648

def k1(g):
    name = "k1_kernel"
    kernel_head(g, name, 256)
    e = g.e
    e("s_load_dwordx8 s[4:11], s[0:1], 0")
    e("s_load_dwordx2 s[12:13], s[0:1], 80")
    map_imajor(g, 14, 15, 17)
    e("""
    v_lshrrev_b32 v2, 6, v0
    v_and_b32 v1, 63, v0
    s_mov_b32 s40, 0x00003f80
    s_mov_b32 s41, 0x3f800000
    s_mov_b32 s42, 0x3f803f80
    v_readfirstlane_b32 s16, v2
    v_lshrrev_b32 v3, 3, v1
    v_and_b32 v4, 7, v1
    v_mul_u32_u24 v5, 1152, v3
    v_lshl_add_u32 v5, v4, 4, v5
    s_lshl_b32 s17, s14, 6
    s_lshl_b32 s18, s16, 3
    s_add_u32 s17, s17, s18
    s_mul_i32 s18, s17, 1152
    s_add_u32 s19, s18, 36864
    s_waitcnt lgkmcnt(0)""")
    srd(g, 24, 4, 2359296)
    XR = 16
    for rt in range(2):
        for n in range(9):
            e(f"buffer_load_dwordx4 {vr(XR+36*rt+4*n)}, v5, s[24:27], s{18+rt} offen offset:{128*n}", tag=f"x{rt}")
    srd(g, 28, 6, 663552)
    srd(g, 36, 12, WS_SIZE)
    stamp(g, 1, 0, 36, 250)
    e("""
    s_cmp_eq_u32 s15, 1
    s_cselect_b32 s32, s10, s8
    s_cselect_b32 s33, s11, s9
    s_cmp_lt_u32 s15, 2
    s_cselect_b32 s34, 20736, 0
    s_mov_b32 s35, 0x00020000
    v_mul_u32_u24 v6, 57, v1
    v_lshrrev_b32 v6, 9, v6
    v_mul_u32_u24 v7, 9, v6
    v_sub_u32 v7, v1, v7
    v_mul_u32_u24 v6, 1152, v6
    v_lshl_add_u32 v6, v7, 4, v6
    v_mul_u32_u24 v7, 43, v1
    v_lshrrev_b32 v7, 7, v7
    v_mul_u32_u24 v8, 3, v7
    v_sub_u32 v8, v1, v8
    v_mul_u32_u24 v7, 36, v7
    v_lshl_add_u32 v7, v8, 4, v7
    s_mul_i32 s20, s15, 144
    s_mul_i32 s21, s16, 6912
    s_add_u32 s20, s20, s21
    s_mul_i32 s21, s16, 648
    s_mul_i32 s22, s16, 864
    s_mov_b32 exec_hi, 0x003fffff""")
    u = 0; uk = 0
    for c in range(4):
        for q in range(8):
            if q % 4 == 0:
                e(f"s_add_u32 m0, s22, {KVI + 3456*uk}")
                e(f"s_add_u32 s23, s21, {2592*uk}")
                e(f"buffer_load_dwordx4 v7, s[32:35], s23 offen lds", tag=f"w{c}")
                uk += 1
            else:
                e(f"s_add_u32 m0, s22, {WQ + 3456*u}")
                e(f"s_add_u32 s23, s20, {27648*u}")
                e(f"buffer_load_dwordx4 v6, s[28:31], s23 offen lds", tag=f"w{c}")
                u += 1
    e("s_mov_b32 exec_hi, -1")
    e("""
    s_lshl_b32 s21, s16, 3
    v_add_u32 v9, s21, v3
    v_lshlrev_b32 v10, 2, v9
    v_xor_b32 v9, v9, v4
    v_lshlrev_b32 v9, 4, v9
    v_lshl_add_u32 v9, v4, 9, v9
    v_and_b32 v11, 31, v1
    v_lshrrev_b32 v12, 5, v1""")
    for q in range(4):
        e(f"v_add_u32 v13, {2*q}, v12")
        e(f"v_xor_b32 v13, v13, v11")
        e(f"v_lshlrev_b32 v13, 4, v13")
        e(f"v_lshl_add_u32 v{88+q}, v12, 9, v13")
    e("""
    v_bfe_u32 v13, v1, 2, 2
    v_lshl_add_u32 v13, v12, 3, v13
    v_and_b32 v14, 3, v1
    v_bfe_u32 v15, v1, 4, 1
    s_cmp_lt_u32 s16, 2
    s_cbranch_scc0 k1_a23""")
    e(f"""
    s_mul_i32 s21, s16, 72
    s_add_u32 s21, s21, {WQ}
    v_mul_u32_u24 v92, 40, v15
    v_lshl_add_u32 v92, v14, 3, v92
    v_add_u32 v92, s21, v92
    v_mov_b32 v95, 144
    s_branch k1_adone""")
    g.label("k1_a23")
    e("s_cmp_eq_u32 s16, 2")
    e("s_cbranch_scc0 k1_a3")
    e(f"""
    v_mul_u32_u24 v92, 36, v14
    v_add_u32 v92, {WQ+32}, v92
    v_mov_b32 v95, 144
    v_and_b32 v96, 1, v14
    v_cmp_eq_u32 vcc, 1, v96
    v_mov_b32 v97, {KVI+32}
    v_mov_b32 v98, 48
    v_cndmask_b32 v92, v92, v97, vcc
    v_cndmask_b32 v95, v95, v98, vcc
    v_cmp_eq_u32 vcc, 1, v15
    v_lshlrev_b32 v97, 3, v14
    v_add_u32 v97, {KVI}, v97
    v_cndmask_b32 v92, v92, v97, vcc
    v_cndmask_b32 v95, v95, v98, vcc
    s_branch k1_adone""")
    g.label("k1_a3")
    e(f"""
    v_and_b32 v96, 1, v14
    v_lshrrev_b32 v97, 1, v14
    v_lshl_add_u32 v96, v96, 1, v97
    v_lshlrev_b32 v92, 3, v96
    v_cmp_eq_u32 vcc, 1, v15
    v_mov_b32 v97, 32
    v_mov_b32 v95, 48
    v_cndmask_b32 v92, v92, v97, vcc
    v_add_u32 v92, {KVI}, v92""")
    g.label("k1_adone")
    e("""
    v_mad_u32_u24 v92, v13, v95, v92
    v_lshl_add_u32 v93, v95, 2, v92
    v_lshlrev_b32 v94, 4, v95""")

    def stats_center(rt):
        X = XR + 36 * rt
        g.wait(vm=f"x{rt}")
        e("v_mov_b32 v100, 0")
        e("v_mov_b32 v101, 0")
        for d in range(36):
            e(f"v_dot2_f32_bf16 v100, v{X+d}, s42, v100")
            e(f"v_dot2_f32_bf16 v101, v{X+d}, v{X+d}, v101")
        for ctl in ("quad_perm:[1,0,3,2]", "quad_perm:[2,3,0,1]", "row_half_mirror"):
            e(f"v_add_f32_dpp v100, v100, v100 {ctl} row_mask:0xf bank_mask:0xf")
            e(f"v_add_f32_dpp v101, v101, v101 {ctl} row_mask:0xf bank_mask:0xf")
        e(f"""
        v_mul_f32 v102, {fhex(-1/576)}, v100
        v_mul_f32 v101, {fhex(1/576)}, v101
        v_fma_f32 v101, -v102, v102, v101
        v_add_f32 v101, {fhex(1e-5)}, v101
        v_rsq_f32 v101, v101
        v_sub_f32 v103, 0, v102""")
        e(f"ds_write_b32 v10, v101 offset:{ST + 128*rt}")
        e(f"""
        s_lshl_b32 s21, s14, 8
        s_add_u32 s21, s21, {WS_MX + 128*rt}
        s_cmp_eq_u32 s15, 0
        s_cbranch_scc0 k1_nomean{rt}""")
        g.raw(f"    buffer_store_dword v103, v10, s[36:39], s21 offen")
        g.label(f"k1_nomean{rt}")
        T = 104
        for d0 in range(0, 36, 4):
            for d in range(4):
                e(f"v_dot2_f32_bf16 v{T+2*d}, v{X+d0+d}, s40, v102")
                e(f"v_dot2_f32_bf16 v{T+2*d+1}, v{X+d0+d}, s41, v102")
            if d0 > 0:
                pass
            for d in range(4):
                e(f"v_cvt_pk_bf16_f32 v{X+d0+d}, v{T+2*d}, v{T+2*d+1}")
    def xwrite(rt):
        X = XR + 36 * rt
        for n in range(9):
            e(f"ds_write_b128 v9, {vr(X+4*n)} offset:{XI + 4096*n}")
    g.wait(vm="x0"); stamp(g, 1, 1, 36, 250)
    stats_center(0)
    xwrite(0)
    g.wait_all(vm=False)
    e("s_barrier")
    for s in range(36):
        e(f"ds_read_b128 {ar(4*s)}, v{88+s%4} offset:{XI+1024*s}")
    stats_center(1)
    g.wait_all(vm=False)
    e("s_barrier")
    xwrite(1)
    g.wait_all(vm=False)
    stamp(g, 1, 2, 36, 250)
    RING = 128; ACC = 160; LA = 3
    vm0 = list(g.vmq)
    def mainloop(swapped, compute=True):
        g.vmq = list(vm0); g.lgq = []
        def issue(s):
            if s % 9 == 0:
                g.wait(vm=f"w{s//9}")
                e("s_barrier")
            if not compute: return
            b = RING + 8 * (s % 4)
            e(f"ds_read_b64_tr_b16 {vr(b,2)}, v92", tag=f"k{s}")
            e(f"ds_read_b64_tr_b16 {vr(b+2,2)}, v93", tag=f"k{s}")
            e(f"ds_read_b128 {vr(b+4)}, v{88+s%4} offset:{XI+1024*s}", tag=f"k{s}")
            e("v_add_u32 v92, v92, v94")
            e("v_add_u32 v93, v93, v94")
        for s in range(LA): issue(s)
        for s in range(36):
            b = RING + 8 * (s % 4)
            if compute:
                g.wait(lg=f"k{s}")
                for rt in range(2):
                    xo = ar(4*s) if rt == 0 else vr(b+4)
                    c = "0" if s == 0 else vr(ACC+16*rt, 16)
                    A, B = (xo, vr(b)) if swapped else (vr(b), xo)
                    e(f"v_mfma_f32_32x32x16_bf16 {vr(ACC+16*rt,16)}, {A}, {B}, {c}")
            if s + LA < 36: issue(s + LA)
    e("s_cmp_eq_u32 s16, 3")
    e("s_cbranch_scc1 k1_w3")
    mainloop(False)
    stamp(g, 1, 3, 36, 250)
    e("v_lshlrev_b32 v13, 2, v11")
    e(f"ds_read_b32 v100, v13 offset:{ST}")
    e(f"ds_read_b32 v101, v13 offset:{ST+128}")
    e(f"""
    s_lshl_b32 s20, s14, 6
    s_lshl_b32 s21, s15, 2
    s_add_u32 s20, s20, s21
    s_mul_i32 s20, s20, {QREC}
    v_lshlrev_b32 v14, 4, v1
    s_waitcnt lgkmcnt(0)
    s_cmp_eq_u32 s16, 2
    s_cbranch_scc1 k1_e2""")
    e(f"""
    s_mul_i32 s21, s16, {2*QREC}
    s_add_u32 s20, s20, s21
    s_add_u32 s21, s20, {32*QREC}
    v_mul_f32 v100, {fhex(CQ)}, v100
    v_mul_f32 v101, {fhex(CQ)}, v101
    v_cmp_gt_u32 vcc, 32, v1""")
    e(f"""
    v_add_u32 v15, 512, v14
    v_subrev_u32 v96, 504, v14
    v_cndmask_b32 v15, v96, v15, vcc
    v_add_u32 v96, 520, v14
    v_lshlrev_b32 v97, 3, v11
    v_add_u32 v98, 1024, v97
    v_cndmask_b32 v96, v98, v96, vcc
    v_mul_u32_u24 v98, {QREC}, v12
    v_add_u32 v97, v97, v98""")
    for rt in range(2):
        A = ACC + 16 * rt
        for r in range(16): e(f"v_mul_f32 v{A+r}, v{A+r}, v{100+rt}")
        e(f"v_mul_f32 v102, v{A}, v{A}")
        e(f"v_mul_f32 v103, v{A+8}, v{A+8}")
        for r in range(1, 8):
            e(f"v_fmac_f32 v102, v{A+r}, v{A+r}")
            e(f"v_fmac_f32 v103, v{A+8+r}, v{A+8+r}")
        P = 104 + 8 * rt
        for u in range(8): e(f"v_cvt_pk_bf16_f32 v{P+u}, v{A+2*u}, v{A+2*u+1}")
        e("v_permlane32_swap_b32 v102, v103")
        e(f"v_add_f32 v{120+rt}, v102, v103")
        so = f"s{20+rt}"
        e(f"buffer_store_dwordx4 {vr(P)}, v14, s[36:39], {so} offen")
        e(f"buffer_store_dword v{P+4}, v14, s[36:39], {so} offen offset:{QREC+4}")
        e(f"buffer_store_dword v{P+6}, v14, s[36:39], {so} offen offset:{QREC+12}")
        e(f"buffer_store_dword v{P+5}, v15, s[36:39], {so} offen offset:{QREC}")
        e(f"buffer_store_dword v{P+7}, v96, s[36:39], {so} offen offset:{QREC}")
        e(f"buffer_store_dword v{120+rt}, v97, s[36:39], {so} offen offset:{1024+256}")
    stamp(g, 1, 4, 36, 250)
    e("s_endpgm")
    g.label("k1_e2")
    e(f"""
    s_add_u32 s21, s20, {32*QREC}
    v_mul_f32 v102, {fhex(CQ)}, v100
    v_mul_f32 v103, {fhex(CQ)}, v101
    v_cmp_gt_u32 vcc, 32, v1
    v_lshlrev_b32 v15, 3, v11
    v_mov_b32 v99, s42
    v_cndmask_b32 v102, v100, v102, vcc
    v_cndmask_b32 v103, v101, v103, vcc
    v_xor_b32 v96, 512, v14""")
    for rt in range(2):
        A = ACC + 16 * rt
        for r in range(8): e(f"v_mul_f32 v{A+r}, v{A+r}, v{102+rt}")
        for r in range(8, 16): e(f"v_mul_f32 v{A+r}, v{A+r}, v{100+rt}")
        P = 104 + 8 * rt; N = 120 + 4 * rt
        for h in range(4):
            e(f"v_mul_f32 v{N+h}, v{A+2*h}, v{A+2*h}")
            e(f"v_fmac_f32 v{N+h}, v{A+2*h+1}, v{A+2*h+1}")
        for u in range(8): e(f"v_cvt_pk_bf16_f32 v{P+u}, v{A+2*u}, v{A+2*u+1}")
    e("s_mov_b32 exec_hi, 0")
    for rt in range(2):
        P = 104 + 8 * rt; N = 120 + 4 * rt
        so = f"s{20+rt}"
        e(f"s_add_u32 s22, {so}, {2*QREC}")
        e(f"buffer_store_dword v{P}, v15, s[36:39], {so} offen offset:1024")
        e(f"buffer_store_dword v{P+1}, v14, s[36:39], {so} offen offset:{QREC}")
        e(f"buffer_store_dword v{P+2}, v15, s[36:39], s22 offen offset:1024")
        e(f"buffer_store_dword v{P+3}, v14, s[36:39], s22 offen offset:{QREC}")
        e(f"buffer_store_dword v{N}, v15, s[36:39], {so} offen offset:{1024+256+4}")
        e(f"buffer_store_dword v{N+1}, v15, s[36:39], {so} offen offset:{QREC+1024+256+4}")
        e(f"buffer_store_dword v{N+2}, v15, s[36:39], s22 offen offset:{1024+256+4}")
        e(f"buffer_store_dword v{N+3}, v15, s[36:39], s22 offen offset:{QREC+1024+256+4}")
    e("s_mov_b32 exec_hi, -1")
    e("s_cmp_eq_u32 s15, 0")
    e(f"s_cbranch_scc0 {name}_end")
    e(f"""
    s_mul_i32 s20, s14, {2*2304}
    s_add_u32 s20, s20, {WS_KV}
    s_lshr_b32 s21, s14, 1
    s_lshl_b32 s21, s21, 10
    s_and_b32 s22, s14, 1
    s_lshl_b32 s22, s22, 3
    s_add_u32 s21, s21, s22
    s_add_u32 s21, s21, {WS_KL}
    s_lshl_b32 s22, s14, 3
    s_add_u32 s22, s22, {WS_KN}""")
    for rt in range(2):
        A = ACC + 16 * rt; P = 104 + 8 * rt; N = 120 + 4 * rt
        e(f"buffer_store_dwordx4 {vr(P+4)}, v14, s[36:39], s20 offen offset:{2304*rt}")
        e(f"v_cndmask_b32 v{128+rt}, v{P}, v99, vcc")
        e(f"v_cndmask_b32 v{130+rt}, v{N}, 0, vcc")
        for r in range(8, 16): e(f"v_fmac_f32 v{130+rt}, v{A+r}, v{A+r}")
    e(f"buffer_store_dwordx2 v[128:129], v96, s[36:39], s21 offen")
    e("v_permlane32_swap_b32 v130, v131")
    e("v_add_f32 v130, v130, v131")
    e("v_mov_b32 v131, v130")
    e("v_permlane16_swap_b32 v130, v131")
    e("v_max_f32 v130, v130, v131")
    for sh in (8, 4, 2, 1):
        e(f"v_max_f32_dpp v130, v130, v130 row_ror:{sh} row_mask:0xf bank_mask:0xf")
    e("v_lshlrev_b32 v13, 2, v12")
    e("buffer_store_dword v130, v13, s[36:39], s22 offen")
    e("s_endpgm")
    g.label("k1_w3")
    e("s_cmp_eq_u32 s15, 1")
    e("s_cbranch_scc1 k1_w3v")
    mainloop(False, compute=False)
    e("s_endpgm")
    g.label("k1_w3v")
    mainloop(True)
    e("v_lshlrev_b32 v13, 4, v12")
    for rt in range(2):
        for q in range(4):
            e(f"ds_read_b128 {vr(96+16*rt+4*q)}, v13 offset:{ST+128*rt+32*q}")
    e(f"""
    s_mul_i32 s20, s14, {2*2304}
    s_add_u32 s20, s20, {WS_KV+1024}
    v_mul_u32_u24 v14, 320, v12
    v_lshl_add_u32 v14, v11, 4, v14
    v_cmp_lt_u32 vcc, 17, v11
    v_mov_b32 v15, s42
    s_waitcnt lgkmcnt(0)""")
    for rt in range(2):
        A = ACC + 16 * rt
        for r in range(16): e(f"v_mul_f32 v{A+r}, v{A+r}, v{96+16*rt+r}")
        for u in range(8): e(f"v_cvt_pk_bf16_f32 v{128+8*rt+u}, v{A+2*u}, v{A+2*u+1}")
        for u in range(8): e(f"v_cndmask_b32 v{128+8*rt+u}, v{128+8*rt+u}, v15, vcc")
    e("s_mov_b32 exec_lo, 0x000fffff")
    e("s_mov_b32 exec_hi, 0x000fffff")
    for rt in range(2):
        for a in range(2):
            e(f"buffer_store_dwordx4 {vr(128+8*rt+4*a)}, v14, s[36:39], s20 offen offset:{2304*rt+640*a}")
    kernel_tail(g, name)
    return name, 256, K1_LDS
```

```python
from common import *
K2_LDS = 98304 + 1024
QM, QL, KL, S, P = 16, 48, 80, 96, 128
RA, RB, RO = 144, 176, 212
KVR = 128
BMAX2 = 40.0 * 40.0

def repack_setup(g):
    e = g.e
    e("""
    s_and_b32 s44, s2, 7
    s_lshr_b32 s45, s2, 3
    s_lshl_b32 s45, s45, 2
    s_add_u32 s45, s45, s16
    v_lshrrev_b32 v4, 4, v1
    v_bfe_u32 v5, v1, 3, 1
    v_and_b32 v6, 7, v1""")
    def unit_split():
        e("""
        s_mul_i32 s47, s46, 57
        s_lshr_b32 s47, s47, 9
        s_mul_i32 s48, s47, 9
        s_sub_u32 s48, s46, s48""")
    def w_params(isw2_sreg, srdb):
        e(f"""
        s_cmp_eq_u32 s{isw2_sreg}, 1
        s_cselect_b32 s{srdb}, s10, s8
        s_cselect_b32 s{srdb+1}, s11, s9
        s_mov_b32 s{srdb+2}, 5308416
        s_mov_b32 s{srdb+3}, 0x00020000
        s_mov_b32 s50, 9216
        s_cmov_b32 s50, 1152
        s_mov_b32 s52, 1152
        s_cmov_b32 s52, {576*1152}
        s_mul_i32 s51, s47, s50
        s_lshl_b32 s51, s51, 6
        s_mul_i32 s52, s52, s44
        s_add_u32 s51, s51, s52
        s_lshl_b32 s52, s48, 7
        s_add_u32 s51, s51, s52
        s_lshl_b32 s53, s50, 4
        s_lshl_b32 s54, s50, 3
        s_lshl_b32 s55, s50, 1
        s_mov_b32 s56, s50""")
    def w_dst(vd, isw2_sreg):
        e(f"""
        s_lshl_b32 s57, s47, 2
        v_add_u32 v7, s57, v4
        s_lshl_b32 s57, s48, 2
        v_lshrrev_b32 v8, 1, v6
        v_add_u32 v8, s57, v8
        v_mul_u32_u24 v9, 57, v8
        v_lshrrev_b32 v9, 9, v9
        v_mul_u32_u24 v11, 9, v9
        v_sub_u32 v10, v8, v11
        v_sub_u32 v11, v7, v11
        v_add_u32 v12, 36, v11
        v_min_u32 v11, v11, v12
        v_lshrrev_b32 v12, 1, v10
        v_mad_u32_u24 v11, v12, 36, v11
        v_add_u32 v11, 18, v11
        v_mul_u32_u24 v12, 324, v9
        v_add_u32 v11, v11, v12
        v_and_b32 v12, 1, v10
        v_mul_u32_u24 v13, 57, v7
        v_lshrrev_b32 v13, 9, v13
        v_mul_u32_u24 v14, 315, v13
        v_add_u32 v14, v14, v7
        v_lshrrev_b32 v13, 1, v9
        v_mad_u32_u24 v14, v13, 9, v14
        v_and_b32 v13, 1, v9
        v_cmp_eq_u32 vcc, 8, v10
        s_mul_i32 s57, s44, {4*324}
        s_mul_i32 s58, s{isw2_sreg}, 162
        s_add_u32 s57, s57, s58
        v_cndmask_b32 v11, v11, v14, vcc
        v_cndmask_b32 v12, v12, v13, vcc
        v_add_u32 v11, s57, v11
        v_lshlrev_b32 v11, 10, v11
        v_lshl_add_u32 v11, v5, 9, v11
        v_lshl_add_u32 v11, v12, 8, v11
        v_and_b32 v12, 1, v6
        v_lshl_add_u32 v11, v12, 6, v11
        v_add_u32 v{vd}, {WS_W}, v11""")
    def loads(R, n, srdb, tag):
        e(f"""
        v_mul_lo_u32 v7, v4, s53
        v_mul_lo_u32 v8, v5, s54
        v_lshl_add_u32 v7, v6, 4, v7
        v_add_u32 v7, v7, v8""")
        for rr in range(n):
            if rr % 2 == 0:
                if rr: e("s_add_u32 s51, s51, s55")
                so = "s51"
            else:
                e("s_add_u32 s57, s51, s56"); so = "s57"
            e(f"buffer_load_dwordx4 {vr(R+4*rr)}, v7, s[{srdb}:{srdb+3}], {so} offen", tag=tag)
    e("""
    s_cmp_ge_u32 s45, 81
    s_cselect_b32 s49, 1, 0
    s_cselect_b32 s46, 81, 0
    s_sub_u32 s46, s45, s46""")
    unit_split(); w_params(49, 24); loads(RA, 8, 24, "ra"); w_dst(244, 49)
    e("""
    s_mov_b32 s60, 0
    s_cmp_lt_u32 s45, 34
    s_cbranch_scc0 k2_rb_o
    s_add_u32 s46, s45, 47
    s_mov_b32 s49, 1""")
    unit_split(); w_params(49, 28); w_dst(245, 49)
    e("s_branch k2_rb_ld")
    g.label("k2_rb_o")
    e(f"""
    s_sub_u32 s46, s45, 34
    s_lshl_b32 s46, s46, 3
    s_add_u32 s46, s46, s44
    s_mov_b32 s28, s4
    s_mov_b32 s29, s5
    s_mov_b32 s31, 0x00020000
    s_cmp_lt_u32 s46, 153
    s_cselect_b32 s30, 663552, 0
    s_cselect_b32 s60, 1, 2
    s_cmp_lt_u32 s46, 81
    s_cbranch_scc0 k2_rb_b
    s_mov_b32 s60, 0""")
    unit_split()
    e(f"""
    s_cmp_eq_u32 s47, 8
    s_mov_b32 s53, {18*1152}
    s_cmov_b32 s53, {144*1152}
    s_mov_b32 s54, {8*1152}
    s_cmov_b32 s54, {72*1152}
    s_mov_b32 s55, 2304
    s_cmov_b32 s55, {18*1152}
    s_mov_b32 s56, 1152
    s_mul_i32 s51, s47, {72*1152}
    s_cselect_b32 s51, {16*1152}, s51
    s_lshl_b32 s52, s48, 7
    s_add_u32 s51, s51, s52
    s_lshl_b32 s57, s47, 2
    v_add_u32 v7, s57, v4
    s_lshl_b32 s57, s48, 3
    v_add_u32 v8, s57, v6
    v_mul_u32_u24 v9, 57, v8
    v_lshrrev_b32 v9, 9, v9
    v_mul_u32_u24 v10, 9, v9
    v_sub_u32 v10, v8, v10
    v_lshrrev_b32 v11, 2, v10
    v_lshlrev_b32 v11, 10, v11
    v_lshl_add_u32 v11, v5, 9, v11
    v_bfe_u32 v12, v10, 1, 1
    v_lshl_add_u32 v11, v12, 8, v11
    v_and_b32 v12, 1, v10
    v_lshl_add_u32 v11, v12, 6, v11
    v_lshlrev_b32 v12, 6, v5
    v_add_u32 v12, 2048, v12
    v_cmp_eq_u32 vcc, 8, v10
    v_mul_u32_u24 v9, {WO_J}, v9
    v_mul_u32_u24 v7, 2368, v7
    v_cndmask_b32 v11, v11, v12, vcc
    v_add3_u32 v11, v11, v9, v7
    v_add_u32 v245, {WS_WO}, v11
    s_branch k2_rb_ld""")
    g.label("k2_rb_b")
    e(f"""
    s_sub_u32 s46, s46, 81
    s_lshr_b32 s47, s46, 1
    s_and_b32 s48, s46, 1
    s_mul_i32 s51, s47, {18*1152}
    s_mul_i32 s52, s48, {8*1152}
    s_add_u32 s51, s51, s52
    s_mul_i32 s52, s46, {72*1152}
    s_sub_u32 s52, s52, {(72*64-16)*1152}
    s_cmp_ge_u32 s46, 64
    s_cselect_b32 s51, s52, s51
    s_mov_b32 s53, 2304
    s_cmov_b32 s53, {18*1152}
    s_mov_b32 s54, 1152
    s_mov_b32 s55, 256
    s_mov_b32 s56, 128
    s_mul_i32 s57, s47, 2368
    s_lshl_b32 s58, s48, 5
    s_add_u32 s57, s57, s58
    s_add_u32 s57, s57, {WS_WO+2304}
    v_mul_u32_u24 v11, {WO_J}, v6
    v_lshrrev_b32 v12, 3, v1
    v_lshl_add_u32 v11, v12, 1, v11
    v_add_u32 v245, s57, v11""")
    g.label("k2_rb_ld")
    loads(RB, 9, 28, "rb")
    e("s_mov_b32 s61, 0x05040100")
    e("s_mov_b32 s62, 0x07060302")

def transpose_store(g, R, vd):
    e = g.e
    for c in range(8):
        d, hi = c // 2, c % 2
        for p in range(4):
            e(f"v_perm_b32 v{RO+4*c+p}, v{R+4*(2*p+1)+d}, v{R+4*(2*p)+d}, s{61+hi}")
        e(f"buffer_store_dwordx4 {vr(RO+4*c)}, v{vd}, s[36:39], 0 offen offset:{128*(c//4)+16*(c%4)}")

def repack_process(g):
    e = g.e
    g.wait(vm="rb")
    q = list(g.vmq)
    transpose_store(g, RA, 244)
    e("s_cmp_eq_u32 s60, 0")
    e("s_cbranch_scc0 k2_rp_b")
    transpose_store(g, RB, 245)
    e("s_branch k2_rp_done")
    g.label("k2_rp_b")
    e("s_cmp_eq_u32 s60, 1")
    e("s_cbranch_scc0 k2_rp_done")
    e(f"v_mov_b32 v{RA}, 0")
    for d in range(36): e(f"v_dot2_f32_bf16 v{RA}, v{RB+d}, s42, v{RA}")
    for ctl in ("quad_perm:[1,0,3,2]", "quad_perm:[2,3,0,1]", "row_half_mirror"):
        e(f"v_add_f32_dpp v{RA}, v{RA}, v{RA} {ctl} row_mask:0xf bank_mask:0xf")
    e(f"""
    v_mul_f32 v{RA}, {fhex(1/576)}, v{RA}
    v_cvt_pk_bf16_f32 v{RA+1}, v{RA}, v{RA}
    v_lshlrev_b32 v{RA+2}, 16, v{RA+1}
    v_sub_f32 v{RA+2}, v{RA}, v{RA+2}
    v_cvt_pk_bf16_f32 v{RA+2}, v{RA+2}, v{RA+2}
    buffer_store_short v{RA+1}, v245, s[36:39], 0 offen
    buffer_store_short v{RA+2}, v245, s[36:39], 0 offen offset:16""")
    g.label("k2_rp_done")
    g.vmq = q

def k2(g, repack_at=3):
    name = "k2_kernel"
    kernel_head(g, name, 256)
    e = g.e
    e("s_load_dwordx8 s[4:11], s[0:1], 32")
    e("s_load_dwordx2 s[12:13], s[0:1], 80")
    map_imajor(g, 14, 15, 17)
    e("""
    v_lshrrev_b32 v2, 6, v0
    v_and_b32 v1, 63, v0
    s_mov_b32 s42, 0x3f803f80
    v_readfirstlane_b32 s16, v2
    v_lshlrev_b32 v2, 4, v1
    v_lshlrev_b32 v4, 3, v1
    v_lshlrev_b32 v5, 2, v1
    v_and_b32 v6, 31, v1
    v_and_b32 v7, 3, v1
    v_add_u32 v7, 16, v7
    v_cmp_gt_u32 vcc, 16, v6
    v_lshrrev_b32 v8, 5, v1
    v_mul_u32_u24 v8, 320, v8
    v_cndmask_b32 v6, v7, v6, vcc
    v_lshl_add_u32 v3, v6, 4, v8""")
    e(f"""
    s_lshl_b32 s17, s14, 6
    s_lshl_b32 s18, s15, 2
    s_add_u32 s17, s17, s18""")
    for pp in range(4):
        e(f"""
        s_add_u32 s18, s16, {pp+1}
        s_and_b32 s{68+pp}, s18, 3
        s_lshr_b32 s19, s{68+pp}, 1
        s_lshl_b32 s19, s19, 5
        s_and_b32 s20, s18, 1
        s_lshl_b32 s20, s20, 1
        s_add_u32 s19, s19, s20
        s_add_u32 s19, s19, s17
        s_mul_i32 s{64+pp}, s19, {QREC}""")
    e(f"""
    s_mul_i32 s43, s16, {16*2304}
    s_add_u32 s43, s43, {WS_KV}
    s_lshl_b32 s21, s16, 12
    s_add_u32 s21, s21, {WS_KL}
    s_mov_b32 s22, {WS_KN}
    s_waitcnt lgkmcnt(0)""")
    srd(g, 36, 12, WS_SIZE)
    stamp(g, 2, 0, 36, 252)
    e("buffer_load_dword v15, v5, s[36:39], s22 offen", tag="kn")
    for q in range(8):
        e(f"buffer_load_dwordx2 {vr(QL+4*q,2)}, v4, s[36:39], s{64+q//2} offen offset:{QREC*(q%2)+1024}", tag="ql")
    def kvload(t):
        l = []
        b = KVR + 12 * (t % 8); o = 2304 * (t % 2)
        l.append((f"buffer_load_dwordx4 {ar(b)}, v2, s[36:39], s43 offen offset:{o}", f"kv{t}"))
        l.append((f"buffer_load_dwordx4 {ar(b+4)}, v3, s[36:39], s43 offen offset:{o+1024}", f"kv{t}"))
        l.append((f"buffer_load_dwordx4 {ar(b+8)}, v3, s[36:39], s43 offen offset:{o+1664}", f"kv{t}"))
        if t % 2 == 1: l.append((f"s_add_u32 s43, s43, 4608", None))
        return l
    e(f"buffer_load_dwordx4 {vr(KL)}, v2, s[36:39], s21 offen", tag="kv0")
    for q in range(8):
        e(f"buffer_load_dwordx4 {vr(QM+4*q)}, v2, s[36:39], s{64+q//2} offen offset:{QREC*(q%2)}", tag="kv0")
    for t in range(8):
        for ins, tag in kvload(t): e(ins, tag=tag)
        if t in (1, 2, 3):
            e(f"buffer_load_dwordx4 {vr(KL+4*t)}, v2, s[36:39], s21 offen offset:{1024*t}", tag=f"kv{t+1}")
    repack_setup(g)
    for pp in range(3):
        e(f"""
        s_lshl_b32 s17, s{68+pp}, 3
        s_add_u32 s17, s17, s16
        s_mul_i32 s17, s17, 3072
        v_add_u32 v{246+pp}, s17, v2
        s_lshl_b32 s17, s16, 3
        s_add_u32 s17, s17, s{68+pp}
        s_mul_i32 s17, s17, 3072
        v_add_u32 v{249+pp}, s17, v2""")
    g.wait(vm="kn")
    e("""
    v_mov_b32 v14, v15
    v_permlane32_swap_b32 v14, v15
    v_max_f32 v15, v14, v15
    v_mov_b32 v14, v15
    v_permlane16_swap_b32 v14, v15
    v_max_f32 v15, v14, v15""")
    for sh in (8, 4, 2, 1):
        e(f"v_max_f32_dpp v15, v15, v15 row_ror:{sh} row_mask:0xf bank_mask:0xf")
    g.wait(vm="ql")
    e("s_mov_b32 exec_lo, 0")
    for q in range(8):
        e(f"v_add_f32 v{QL+4*q}, v{QL+4*q}, v{QL+4*q+1}")
        e(f"v_mul_f32 v{QL+4*q}, v{QL+4*q}, v15")
    e(f"v_max3_f32 v14, v{QL}, v{QL+4}, v{QL+8}")
    e(f"v_max3_f32 v14, v14, v{QL+12}, v{QL+16}")
    e(f"v_max3_f32 v14, v14, v{QL+20}, v{QL+24}")
    e(f"v_max_f32 v14, v14, v{QL+28}")
    e(f"v_cmp_nge_f32 vcc, {fhex(BMAX2)}, v14")
    for q in range(8): e(f"v_sqrt_f32 v{QL+4*q}, v{QL+4*q}")
    for q in range(8): e(f"v_cvt_pk_bf16_f32 v{QL+4*q}, -v{QL+4*q}, 0")
    e("s_mov_b32 exec_lo, -1")
    for q in range(8):
        e(f"v_mov_b32 v{QL+4*q+1}, 0")
        e(f"v_mov_b32 v{QL+4*q+2}, 0")
    e("s_cbranch_vccnz k2_fallback")
    g.label("k2_main")
    for q in range(8): e(f"v_mov_b32 v{QL+4*q+3}, v{QL+4*q}")

    def qk(n):
        t, q, u = n // 8, n % 8, n % 2
        b = KVR + 12 * (t % 8); D = vr(S + 16 * u, 16)
        return [f"v_mfma_f32_32x32x16_bf16 {D}, {ar(b)}, {vr(QM+4*q)}, 0",
                f"v_mfma_f32_32x32x8bf16_1k {D}, {vr(KL+2*(t//2),2)}, {vr(QL+4*q+2*(t%2),2)}, {D}"]
    def pv(n, a):
        t, q, u = n // 8, n % 8, n % 2
        b = KVR + 12 * (t % 8) + 4 + 4 * a; O = ar(16 * q, 16)
        c = "0" if (t == 0 and a == 0) else O
        return f"v_mfma_f32_32x32x16_bf16 {O}, {ar(b)}, {vr(P+8*u+4*a)}, {c}"
    def owrite(q):
        return [(f"ds_write_b128 v{246+q//2}, {ar(16*q+4*k)} offset:{12288*(q%2)+1024*k}", None) for k in range(3)]
    g.wait(vm="kv0")
    stamp(g, 2, 1, 36, 252)
    for ins in qk(0): e(ins)
    import os
    if os.environ.get("DBG") == "k2a":
        dump(g, ["v15", "v48", "v49", "v50", "v51", "v80", "v81", "v16", "a128", "a132", "a136"] + [f"v{96+r}" for r in range(16)])
    g.log_nops = True
    for n in range(128):
        t, q, u = n // 8, n % 8, n % 2
        Sb = S + 16 * u; Pb = P + 8 * u
        if n % 16 == 0 and n: stamp(g, 2, 1 + n // 16, 36, 252)
        if n == 8 * repack_at + 3:
            g.log_nops = False
            repack_process(g)
            g.log_nops = True
        seq = []
        for r in range(0, 16, 2):
            seq.append(f"v_exp_f32 v{Sb+r}, v{Sb+r}")
            if r == 0 and n > 0:
                seq.append(f"v_cvt_pk_bf16_f32 v{P+8*(1-u)+7}, v{S+16*(1-u)+14}, v{S+16*(1-u)+15}")
            seq.append(f"v_exp_f32 v{Sb+r+1}, v{Sb+r+1}")
            if r >= 2: seq.append(f"v_cvt_pk_bf16_f32 v{Pb+r//2-1}, v{Sb+r-2}, v{Sb+r-1}")
        m = (qk(n + 1) if n < 127 else [None, None]) + ([pv(n - 1, 0), pv(n - 1, 1)] if n > 0 else [None, None])
        extra = []
        if q == 1 and t >= 1 and t + 7 < 16: extra = kvload(t + 7)
        if t == 15 and q >= 2: extra = owrite(q - 2)
        after = {0: [], 1: [], 2: [], 3: []}
        order = [0, 2, 3, 3] if not (t == 15) else [2, 3, 3, 1]
        for k, x in enumerate(extra): after[order[k]].append(x)
        mpos = {3: 0, 9: 1, 15: 2, 21: 3}
        for i, ins in enumerate(seq):
            if i in mpos:
                k = mpos[i]
                if k == 0 and q == 7 and t < 15: g.wait(vm=f"kv{t+1}")
                if m[k]: e(m[k])
                for x, tag in after[k]: e(x, tag=tag)
            e(ins)
    g.log_nops = False
    e(f"v_cvt_pk_bf16_f32 v{P+8+7}, v{S+16+14}, v{S+16+15}")
    e(pv(127, 0)); e(pv(127, 1))
    stamp(g, 2, 9, 36, 252)
    g.wait_all(vm=False)
    e("s_barrier")
    T = 16
    for ee in range(2):
        for src in range(3):
            for k in range(3):
                e(f"ds_read_b128 {vr(T+36*ee+12*src+4*k)}, v{249+src} offset:{12288*ee+1024*k}", tag=f"o{ee}")
    e(f"""
    s_lshr_b32 s17, s16, 1
    s_lshl_b32 s18, s14, 1
    s_add_u32 s17, s17, s18
    s_mul_i32 s17, s17, 36864
    s_add_u32 s17, s17, {WS_O}
    s_and_b32 s19, s16, 1
    s_lshl_b32 s18, s15, 12
    s_lshl_b32 s20, s19, 11
    s_add_u32 s18, s18, s20
    s_add_u32 s18, s18, s17
    s_lshl_b32 s20, s15, 9
    s_lshl_b32 s19, s19, 3
    s_add_u32 s20, s20, s19
    s_add_u32 s20, s20, s17
    s_add_u32 s20, s20, 32768""")
    for ee in range(2):
        A = 96 + 16 * ee
        for r in range(11): e(f"v_accvgpr_read_b32 v{A+r}, a{96+16*ee+r}")
        g.wait(lg=f"o{ee}")
        b = T + 36 * ee
        for r in [10] + list(range(10)):
            e(f"v_add_f32 v{b+r}, v{b+r}, v{b+12+r}")
            e(f"v_add_f32 v{A+r}, v{A+r}, v{b+24+r}")
            e(f"v_add_f32 v{A+r}, v{A+r}, v{b+r}")
            if r == 10: e(f"v_rcp_f32 v{A+10}, v{A+10}")
        for r in range(10): e(f"v_mul_f32 v{A+r}, v{A+r}, v{A+10}")
        for uu in range(4): e(f"v_cvt_pk_bf16_f32 v{128+4*ee+uu}, v{A+2*uu}, v{A+2*uu+1}")
        e(f"v_cvt_pk_bf16_f32 v{136+ee}, v{A+8}, v{A+9}")
        e(f"buffer_store_dwordx4 {vr(128+4*ee)}, v2, s[36:39], s18 offen offset:{1024*ee}")
    e("s_mov_b32 exec_hi, 0")
    e(f"buffer_store_dwordx2 v[136:137], v2, s[36:39], s20 offen")
    stamp(g, 2, 10, 36, 252)
    e("s_endpgm")
    g.label("k2_fallback")
    g.vmq = []; g.lgq = []
    M = 128
    e("s_waitcnt vmcnt(0)")
    e("s_mov_b32 exec_lo, 0")
    for q in range(8): e(f"v_mov_b32 v{QL+4*q}, 0")
    e("s_mov_b32 exec_lo, -1")
    for q in range(8): e(f"v_mov_b32 v{M+q}, 0xff7fffff")
    e(f"""
    v_mov_b32 v141, 0
    s_mul_i32 s72, s16, {16*2304}
    s_add_u32 s72, s72, {WS_KV}
    s_mov_b32 s73, 0""")
    g.label("k2_fb_loop")
    e("""
    s_lshr_b32 s74, s73, 2
    s_lshl_b32 s74, s74, 10
    s_and_b32 s75, s73, 3
    s_lshl_b32 s75, s75, 2
    s_add_u32 s74, s74, s75
    s_add_u32 s74, s74, s21
    buffer_load_dwordx4 v[136:139], v2, s[36:39], s72 offen
    buffer_load_dword v140, v2, s[36:39], s74 offen
    s_waitcnt vmcnt(0)""")
    for q in range(8):
        D = vr(S, 16)
        e(f"v_mfma_f32_32x32x16_bf16 {D}, v[136:139], {vr(QM+4*q)}, 0")
        e(f"v_mfma_f32_32x32x8bf16_1k {D}, v[140:141], {vr(QL+4*q,2)}, {D}")
        for r in range(0, 16, 2): e(f"v_max3_f32 v{M+q}, v{S+r}, v{S+r+1}, v{M+q}")
    e("""
    s_add_u32 s72, s72, 2304
    s_add_u32 s73, s73, 1
    s_cmp_lt_u32 s73, 16""")
    g.drain()
    e("s_cbranch_scc1 k2_fb_loop")
    for q in range(8):
        e(f"v_mov_b32 v136, v{M+q}")
        e(f"v_permlane32_swap_b32 v136, v{M+q}")
        e(f"v_max_f32 v{M+q}, v{M+q}, v136")
    e("v_lshlrev_b32 v137, 2, v1")
    for pp in range(4):
        e(f"""
        s_lshl_b32 s17, s{68+pp}, 11
        v_add_u32 v{S+pp}, s17, v137
        s_lshl_b32 s18, s16, 8
        v_add_u32 v138, s18, v{S+pp}
        ds_write_b32 v138, v{M+2*pp}
        ds_write_b32 v138, v{M+2*pp+1} offset:1024""")
    e("s_waitcnt lgkmcnt(0)")
    e("s_barrier")
    for q in range(8):
        for k in range(4):
            e(f"ds_read_b32 v{S+8+k}, v{S+q//2} offset:{1024*(q%2)+256*k}")
        e("s_waitcnt lgkmcnt(0)")
        e(f"v_max3_f32 v{S+8}, v{S+8}, v{S+9}, v{S+10}")
        e(f"v_max_f32 v{S+8}, v{S+8}, v{S+11}")
        e(f"v_cvt_pk_bf16_f32 v{S+9}, v{S+8}, v{S+8}")
        e(f"v_lshlrev_b32 v{S+9}, 16, v{S+9}")
        e(f"v_sub_f32 v{S+10}, v{S+8}, v{S+9}")
        e("s_mov_b32 exec_lo, 0")
        e(f"v_cvt_pk_bf16_f32 v{QL+4*q}, -v{S+9}, -v{S+10}")
        e("s_mov_b32 exec_lo, -1")
    e("s_barrier")
    g.drain()
    e("s_branch k2_main")
    kernel_tail(g, name)
    return name, 256, K2_LDS
```

```python
from common import *
OI, WI = 0, 73728
K3_LDS = WI + WO_J

def k3(g):
    name = "k3_kernel"
    kernel_head(g, name, 256)
    e = g.e
    e("s_load_dwordx2 s[4:5], s[0:1], 0")
    e("s_load_dwordx2 s[12:13], s[0:1], 80")
    map_imajor(g, 14, 15, 17)
    e(f"""
    v_lshrrev_b32 v2, 6, v0
    v_and_b32 v1, 63, v0
    v_lshlrev_b32 v3, 4, v0
    v_readfirstlane_b32 s16, v2
    v_lshlrev_b32 v2, 4, v1
    v_and_b32 v11, 31, v1
    v_lshrrev_b32 v12, 5, v1
    s_mul_i32 s18, s14, 73728
    s_add_u32 s18, s18, {WS_O}
    s_mul_i32 s19, s15, {WO_J}
    s_add_u32 s19, s19, {WS_WO}
    s_lshl_b32 s22, s16, 10
    s_waitcnt lgkmcnt(0)""")
    srd(g, 36, 12, WS_SIZE)
    stamp(g, 3, 0, 36, 250)
    srd(g, 24, 4, 2359296)
    for c in range(3):
        seq = []
        for k in range(7):
            seq.append(("w", 7 * c + k))
            if k < 6: seq.append(("o", 9 * (k % 2) + 3 * c + k // 2))
        for kind, r in seq:
            if kind == "w":
                e(f"s_add_u32 m0, s22, {WI + 4096*r}")
                e(f"s_add_u32 s23, s19, {4096*r}")
            else:
                e(f"s_add_u32 m0, s22, {OI + 4096*r}")
                e(f"s_add_u32 s23, s18, {4096*r}")
            e("buffer_load_dwordx4 v3, s[36:39], s23 offen lds", tag=f"c{c}")
    e(f"""
    s_lshr_b32 s20, s16, 1
    s_and_b32 s21, s16, 1
    s_lshl_b32 s17, s14, 1
    s_add_u32 s17, s17, s20
    s_mul_i32 s44, s17, {32*1152}
    s_mul_i32 s45, s15, 144
    s_add_u32 s44, s44, s45
    s_lshl_b32 s45, s21, 6
    s_add_u32 s45, s45, s44
    v_mul_u32_u24 v4, 1152, v11
    v_lshl_add_u32 v5, v12, 4, v4
    s_lshl_b32 s46, s17, 7
    s_add_u32 s47, s46, {WS_MX}
    v_lshlrev_b32 v6, 2, v11""")
    e("buffer_load_dwordx4 v[16:19], v5, s[24:27], s45 offen", tag="x")
    e("buffer_load_dwordx4 v[20:23], v5, s[24:27], s45 offen offset:32", tag="x")
    e("buffer_load_dwordx4 v[24:27], v4, s[24:27], s44 offen offset:128", tag="x")
    e("buffer_load_dword v28, v6, s[36:39], s47 offen", tag="x")
    e(f"""
    s_mul_i32 s48, s20, 36864
    s_lshl_b32 s49, s21, 10
    s_add_u32 s50, s48, s49
    s_sub_u32 s51, s48, s49
    v_add_u32 v30, s50, v2
    v_add_u32 v31, s51, v2
    s_mul_i32 s52, s21, 2368
    s_add_u32 s50, s49, {WI}
    s_sub_u32 s51, s50, s52
    s_add_u32 s50, s50, s52
    v_add_u32 v32, s50, v2
    v_add_u32 v33, s51, v2
    v_add_u32 v34, {18*2368}, v32
    v_add_u32 v35, {18*2368}, v33
    v_and_b32 v7, 3, v1
    v_lshlrev_b32 v7, 4, v7
    v_bfe_u32 v8, v1, 3, 1
    v_lshl_add_u32 v7, v8, 7, v7
    v_lshl_add_u32 v7, v12, 6, v7
    v_and_b32 v8, 1, v1
    v_lshlrev_b32 v8, 4, v8
    v_lshl_add_u32 v8, v12, 5, v8
    v_add_u32 v8, 256, v8
    v_cmp_gt_u32 vcc, 16, v11
    s_add_u32 s50, s52, {WI+2048}
    v_cndmask_b32 v7, v8, v7, vcc
    v_add_u32 v36, s50, v7
    v_add_u32 v37, {18*2368}, v36""")
    RING = 64; A0 = 128; A2 = 144; LA = 3
    def issue(sg):
        if sg % 12 == 0:
            g.wait(vm=f"c{sg//12}")
            e("s_barrier")
        b = RING + 12 * (sg % 4); par = sg % 2; hi = sg // 18
        e(f"ds_read_b128 {vr(b)}, v{30+par} offset:{1024*sg}", tag=f"k{sg}")
        e(f"ds_read_b128 {vr(b+4)}, v{32+2*hi+par} offset:{2368*(sg%18)}", tag=f"k{sg}")
        if par == 0: e(f"ds_read_b128 {vr(b+8)}, v{36+hi} offset:{2368*(sg%18)}", tag=f"k{sg}")
    g.wait(vm="c0"); stamp(g, 3, 1, 36, 250)
    for s in range(LA): issue(s)
    for sg in range(36):
        b = RING + 12 * (sg % 4)
        g.wait(lg=f"k{sg}")
        e(f"v_mfma_f32_32x32x16_bf16 {vr(A0,16)}, {vr(b+4)}, {vr(b)}, {'0' if sg == 0 else vr(A0,16)}")
        if sg % 2 == 0:
            e(f"v_mfma_f32_32x32x16_bf16 {vr(A2,16)}, {vr(b+8)}, {vr(b)}, {'0' if sg == 0 else vr(A2,16)}")
        if sg + LA < 36: issue(sg + LA)
    stamp(g, 3, 2, 36, 250)
    e("s_barrier")
    e(f"""
    s_mul_i32 s48, s16, 3072
    s_xor_b32 s49, s16, 1
    s_mul_i32 s49, s49, 3072
    v_add_u32 v7, s48, v2
    v_add_u32 v8, s49, v2""")
    for k in range(3): e(f"ds_write_b128 v7, {vr(A2+4*k)} offset:{1024*k}")
    g.wait(vm="x")
    for d in range(8):
        e(f"v_lshlrev_b32 v40, 16, v{16+d}")
        e(f"v_and_b32 v41, 0xffff0000, v{16+d}")
        e(f"v_add_f32 v{A0+2*d}, v{A0+2*d}, v40")
        e(f"v_add_f32 v{A0+2*d+1}, v{A0+2*d+1}, v41")
    g.wait_all(vm=False)
    e("s_barrier")
    for k in range(3): e(f"ds_read_b128 {vr(64+4*k)}, v8 offset:{1024*k}")
    for d in range(4):
        e(f"v_lshlrev_b32 v40, 16, v{24+d}")
        e(f"v_and_b32 v41, 0xffff0000, v{24+d}")
        e(f"v_add_f32 v{A2+2*d}, v{A2+2*d}, v40")
        e(f"v_add_f32 v{A2+2*d+1}, v{A2+2*d+1}, v41")
    e(f"v_add_f32 v28, v28, v{A2+8}")
    e(f"v_add_f32 v28, v28, v{A2+9}")
    e(f"""
    s_mul_i32 s48, s17, 36864
    s_mul_i32 s49, s15, 4608
    s_add_u32 s48, s48, s49
    s_add_u32 s48, s48, {WS_HC}
    s_lshl_b32 s49, s21, 11
    s_add_u32 s49, s49, s48
    s_add_u32 s48, s48, 4096
    s_lshl_b32 s50, s17, 11
    s_lshl_b32 s51, s21, 10
    s_add_u32 s50, s50, s51
    s_lshl_b32 s51, s15, 2
    s_add_u32 s50, s50, s51
    s_add_u32 s50, s50, {WS_SS}
    s_lshl_b32 s47, s46, 1
    s_add_u32 s47, s47, {WS_MH}
    v_lshlrev_b32 v6, 3, v11
    v_lshlrev_b32 v9, 5, v11
    s_waitcnt lgkmcnt(0)
    v_add_f32 v28, v28, v72
    v_add_f32 v28, v28, v73""")
    for r in range(16): e(f"v_sub_f32 v{A0+r}, v{A0+r}, v28")
    e(f"v_mul_f32 v42, v{A0}, v{A0}")
    for r in range(1, 16): e(f"v_fmac_f32 v42, v{A0+r}, v{A0+r}")
    for u in range(8): e(f"v_cvt_pk_bf16_f32 v{48+u}, v{A0+2*u}, v{A0+2*u+1}")
    e("buffer_store_dwordx4 v[48:51], v2, s[36:39], s49 offen")
    e("buffer_store_dwordx4 v[52:55], v2, s[36:39], s49 offen offset:1024")
    e("s_cmp_eq_u32 s21, 0")
    e("s_cbranch_scc0 k3_no8")
    e("s_mov_b32 exec_hi, 0")
    for r in range(8):
        e(f"v_add_f32 v{A2+r}, v{A2+r}, v{64+r}")
        e(f"v_sub_f32 v{A2+r}, v{A2+r}, v28")
        e(f"v_fmac_f32 v42, v{A2+r}, v{A2+r}")
    for u in range(4): e(f"v_cvt_pk_bf16_f32 v{56+u}, v{A2+2*u}, v{A2+2*u+1}")
    e("buffer_store_dwordx4 v[56:59], v2, s[36:39], s48 offen")
    e("s_cmp_eq_u32 s15, 0")
    e("s_cbranch_scc0 k3_nom")
    e("buffer_store_dword v28, v6, s[36:39], s47 offen")
    g.label("k3_nom")
    e("s_mov_b32 exec_hi, -1")
    g.label("k3_no8")
    e("""
    v_mov_b32 v43, v42
    v_permlane32_swap_b32 v42, v43
    v_add_f32 v42, v42, v43
    s_mov_b32 exec_hi, 0
    buffer_store_dword v42, v9, s[36:39], s50 offen""")
    stamp(g, 3, 3, 36, 250)
    kernel_tail(g, name)
    return name, 256, K3_LDS
```

```python
from common import *
from collections import deque
XI, SC = 0, 73728
K4_LDS = SC + 65536
XV, ACC, F, T, RING, NR = 16, 48, 112, 128, 136, 30
SOFF = 20
LOG2E = math.log2(math.e)

def xreg(kap, rt):
    if 4 <= kap < 8: return vr(XV + 8 * (kap - 4) + 4 * rt)
    k = kap if kap < 4 else kap - 4
    return ar(8 * k + 4 * rt)

def cost_of(t):
    op = t.split()[0]
    if op.startswith(TRANS): return 8
    if op.startswith("ds_write_b128"): return 12
    if op.startswith("v_mfma"): return 8
    return 4

def k4(g, budget=32, xrate=2):
    name = "k4_kernel"
    kernel_head(g, name, 256)
    e = g.e
    e("s_load_dwordx2 s[12:13], s[0:1], 80")
    e(f"""
    s_and_b32 s15, s2, 7
    s_lshr_b32 s14, s2, 3
    v_lshrrev_b32 v2, 6, v0
    v_and_b32 v1, 63, v0
    s_mul_i32 s17, s14, 73728
    v_readfirstlane_b32 s16, v2
    v_lshlrev_b32 v2, 4, v1
    v_lshlrev_b32 v9, 5, v1
    s_lshl_b32 s18, s15, 2
    s_add_u32 s18, s18, s16
    s_mul_i32 s18, s18, {324*1024}
    s_add_u32 s{SOFF}, s18, {WS_W}
    s_mul_i32 s19, s16, 9216
    s_add_u32 s17, s17, s19
    s_add_u32 s10, s17, {WS_HC}
    s_lshl_b32 s11, s14, 12
    s_add_u32 s11, s11, {WS_SS}
    s_waitcnt lgkmcnt(0)""")
    srd(g, 4, 12, WS_SIZE)
    stamp(g, 4, 0, 4, 14)
    for k0 in range(0, 9, 4):
        for rt in range(2):
            e(f"s_add_u32 m0, s19, {XI + 36864*rt + 1024*k0}")
            e(f"s_add_u32 s8, s10, {36864*rt + 1024*k0}")
            for k in range(k0, min(k0 + 4, 9)):
                e(f"buffer_load_dwordx4 v2, s[4:7], s8 offen offset:{1024*(k-k0)} lds", tag="x")
    for rt in range(2):
        for h in range(2):
            e(f"buffer_load_dwordx4 {vr(F+8*rt+4*h)}, v9, s[4:7], s11 offen offset:{2048*rt+16*h}", tag="ss")
    early = [k for k in range(36) if k % 9 in (0, 1, 2, 3, 8)]
    oth45 = [k for k in range(9, 36) if k % 9 in (4, 5)]
    oth67 = [k for k in range(9, 36) if k % 9 in (6, 7)]
    jobs = []; start = {}
    def tile(nm, fbase, ks, s, first=True):
        start[nm] = 2 * len(jobs)
        for n, k in enumerate(ks): jobs.append((fbase + k, k, s, first and n == 0, nm))
    tile("E0", 0, range(9), 0); tile("E1", 9, range(9), 1)
    tile("p0", 18, range(36), 0); tile("p1", 54, range(36), 1); tile("p2", 90, range(36), 0)
    p3o = [4, 5] + early + oth45 + [6, 7] + oth67
    tile("p3", 126, p3o, 1)
    W2 = 162
    tile("q0", W2 + 18, early + [4, 5] + oth45, 0)
    tile("F0", W2 + 0, [0, 1, 2, 3, 8, 4, 5, 6, 7], 1)
    tile("q0b", W2 + 18, [6, 7] + oth67, 0, first=False)
    tile("F1", W2 + 9, range(9), 1)
    tile("q1", W2 + 54, range(36), 0); tile("q2", W2 + 90, range(36), 1); tile("q3", W2 + 126, range(36), 0)
    NJ = len(jobs); assert NJ == 324
    def wload(n):
        f = jobs[n][0]
        e(f"buffer_load_dwordx4 {vr(RING+4*(n%NR))}, v2, s[4:7], s{SOFF+f//4} offen offset:{1024*(f%4)}", tag=f"w{n}")
    for n in range(NR):
        if n % 4 == 0 and n: e(f"s_add_u32 s{SOFF+n//4}, s{SOFF}, {1024*n}")
        wload(n)
    for q in range((NR + 3) // 4, 81): e(f"s_add_u32 s{SOFF+q}, s{SOFF}, {4096*q}")
    for q in range(4):
        e(f"""
        s_add_u32 s18, s16, {q}
        s_and_b32 s18, s18, 3
        s_mul_i32 s18, s18, 9216
        v_add_u32 v{3+q}, s18, v2""")
    e(f"""
    s_lshl_b32 s18, s16, 12
    s_add_u32 s18, s18, {SC}
    v_add_u32 v7, s18, v2
    s_lshl_b32 s18, s16, 14
    s_add_u32 s18, s18, {SC}
    v_add_u32 v8, s18, v2
    v_add_u32 v12, 4096, v2
    v_add_u32 v13, 8192, v2
    s_mul_i32 s18, s15, {64*36864}
    s_add_u32 s8, s17, s18
    s_add_u32 s8, s8, {WS_P}
    s_add_u32 s9, s8, 36864
    s_lshl_b32 s11, s14, 9
    s_add_u32 s11, s11, {WS_MH}
    s_or_b32 s10, s15, s16
    v_lshlrev_b32 v9, 3, v1""")
    def xread(k, rt):
        return (f"ds_read_b128 {xreg(k, rt)}, v{3+k//9} offset:{XI + 36864*rt + 1024*(k%9)}", f"x{k}")
    def hwrite(src, k, rt):
        return f"ds_write_b128 v3, {src} offset:{XI + 36864*rt + 1024*k}"
    flags = set()
    FQ = deque()
    RQ = deque()
    def fq(t, at=0, tag=None): FQ.append((at, t, tag))
    def barrier(flag, at=0, need=None):
        def f():
            g.wait_all(vm=False); e("s_barrier"); flags.add(flag)
        FQ.append((at, f, need))
    def silu8(R, rt, dst, at=0, cat=0):
        for h in range(2):
            b = R + 4 * h; t = T + 4 * h
            for r in range(4): fq(f"v_mul_f32 v{t+r}, v{b+r}, v{10+rt}", at)
            for r in range(4): fq(f"v_exp_f32 v{t+r}, v{t+r}", at)
            for r in range(4): fq(f"v_add_f32 v{t+r}, 1.0, v{t+r}", at)
            for r in range(4): fq(f"v_rcp_f32 v{t+r}, v{t+r}", at)
            for r in range(4): fq(f"v_mul_f32 v{b+r}, v{b+r}, v{t+r}", at)
        for u in range(4): fq(f"v_cvt_pk_bf16_f32 v{dst+u}, v{R+2*u}, v{R+2*u+1}", max(at, cat))
    def epart(E, s, at):
        for rt in range(2):
            for A in range(2):
                for h in range(2):
                    fq(f"ds_write_b128 v7, {vr(ACC+32*s+16*rt+8*A+4*h)} offset:{16384*(2*E+A)+2048*rt+1024*h}", at)
    def fin_sum(at):
        S1 = ACC + 32
        for rt in range(2):
            for src in range(4):
                for h in range(2):
                    fq(f"ds_read_b128 {vr(S1+8*src+4*h)}, v8 offset:{4096*src+2048*rt+1024*h}", at, tag=f"f{rt}")
            if rt == 1:
                pass
            fq(("waitlg", f"f{rt}"), at)
            for r in range(8): fq(f"v_add_f32 v{F+8*rt+r}, v{S1+r}, v{S1+8+r}", at)
            for r in range(8): fq(f"v_add_f32 v{S1+16+r}, v{S1+16+r}, v{S1+24+r}", at)
            for r in range(8): fq(f"v_add_f32 v{F+8*rt+r}, v{F+8*rt+r}, v{S1+16+r}", at)
    def ostore(R, rt, gl, at):
        for u in range(4): fq(f"v_cvt_pk_bf16_f32 v{R+u}, v{R+2*u}, v{R+2*u+1}", at)
        fq(f"buffer_store_dwordx4 {vr(R)}, v{[2,12,13][gl//4]}, s[4:7], s{8+rt} offen offset:{1024*(gl%4)}", at, tag="st")
    fq(("waitvm", "ss"))
    for rt in range(2):
        b = F + 8 * rt
        for r in range(4): fq(f"v_add_f32 v{b+r}, v{b+r}, v{b+4+r}")
        fq(f"v_add_f32 v{b}, v{b}, v{b+1}"); fq(f"v_add_f32 v{b+2}, v{b+2}, v{b+3}")
    fq(f"v_add_f32 v10, v{F}, v{F+2}"); fq(f"v_add_f32 v11, v{F+8}, v{F+10}")
    fq(f"v_mov_b32 v14, {fhex(1e-5)}"); fq(f"s_cmp_eq_u32 s10, 0")
    fq("v_permlane32_swap_b32 v10, v11")
    fq("v_add_f32 v10, v10, v11")
    fq(f"v_fmac_f32 v14, {fhex(1/576)}, v10")
    fq("v_rsq_f32 v14, v14")
    def rstore():
        e("s_cbranch_scc0 k4_nors")
        g.raw("    buffer_store_dword v14, v9, s[4:7], s11 offen offset:4")
        g.label("k4_nors")
    fq(f"v_mul_f32 v10, {fhex(-LOG2E)}, v14")
    fq(f"v_mul_f32 v11, {fhex(-LOG2E)}, v14")
    fq(rstore)
    fq("v_permlane32_swap_b32 v10, v11")
    D = 1
    epart(0, 0, start["E1"] + D)
    epart(1, 1, start["p0"] + D)
    barrier("B2", need="xdone")
    fin_sum(0)
    fq(("deadline", start["p1"]))
    for rt in range(2):
        silu8(F + 8 * rt, rt, F + 8 * rt); fq(hwrite(vr(F + 8 * rt), 8, rt))
    for p in range(4):
        s = p % 2; at = start[["p1", "p2", "p3", "q0"][p]] + D
        for a in range(2):
            for rt in range(2):
                R = ACC + 32 * s + 16 * rt + 8 * a
                dst = R if p < 2 else XV + 8 * (2 * p + a - 4) + 4 * rt
                silu8(R, rt, dst, at, cat=at + 4)
                fq(hwrite(vr(dst), 2 * p + a, rt), at)
        fq(("deadline", start[["p2", "p3", "q0", "F0"][p]]))
        if p >= 1: barrier(f"H{p}")
    epart(0, 1, start["q0b"] + D)
    fq(("deadline", start["F1"]))
    def oepi(p, s, at):
        for a in range(2):
            for rt in range(2): ostore(ACC + 32 * s + 16 * rt + 8 * a, rt, 2 * p + a, at)
    oepi(0, 0, start["F1"] + D)
    fq(("deadline", start["q1"]))
    epart(1, 1, start["q1"] + D)
    barrier("B5")
    fin_sum(0)
    for rt in range(2): ostore(F + 8 * rt, rt, 8, 0)
    fq(("deadline", start["q2"]))
    oepi(1, 0, start["q2"] + D)
    fq(("deadline", start["q3"]))
    oepi(2, 1, start["q3"] + D)
    oepi(3, 0, 2 * NJ)
    for k in range(36):
        for rt in range(2): RQ.append((lambda s: True,) + xread(k, rt))
    RQ.append((lambda s: True, "flag", "xdone"))
    p3slot = {k: start["p3"] + 2 * n for n, k in enumerate(p3o)}
    for ks, fl in ((early, "H1"), (oth45, "H2"), (oth67, "H3")):
        for k in ks:
            for rt in range(2):
                RQ.append((lambda s, k=k, rt=rt, fl=fl: fl in flags and s >= p3slot[k] + rt,) + xread(k, rt))
    g.wait(vm="x")
    stamp(g, 4, 1, 4, 0)
    e("s_barrier")
    def rq_pop(slot, n):
        c = 0
        while n > 0 and RQ and RQ[0][0](slot):
            _, t, tag = RQ.popleft()
            if t == "flag": flags.add(tag); continue
            e(t, tag=tag); n -= 1; c += 4
        while RQ and RQ[0][1] == "flag": flags.add(RQ.popleft()[2])
        return c
    def fq_pop(slot, room):
        while FQ:
            at, t, tag = FQ[0]
            if at > slot: break
            if callable(t):
                if tag and tag not in flags: break
                if room < 8: break
                FQ.popleft(); t(); room -= 8; continue
            if isinstance(t, tuple):
                if t[0] == "deadline":
                    assert slot < t[1], ("deadline missed", slot, t[1]); FQ.popleft(); print("k4 deadline", t[1], "met at", slot); continue
                if t[0] == "waitlg" and pend.get(t[1], -99) + 6 > slot: break
                if room < 4: break
                FQ.popleft()
                if t[0] == "waitlg": g.wait(lg=t[1])
                else: g.wait(vm=t[1])
                room -= 4; continue
            c = cost_of(t)
            if c > room or g.need(Ins(t)) > 0:
                sk_r = set(); sk_w = set(); found = None
                for idx in range(min(len(FQ), 14)):
                    at2, t2, tag2 = FQ[idx]
                    if not isinstance(t2, str): break
                    i2 = Ins(t2)
                    if idx and at2 <= slot and cost_of(t2) <= room and t2.startswith("v_") and g.need(i2) == 0 \
                       and not (set(i2.r) & sk_w) and not (set(i2.w) & (sk_r | sk_w)):
                        found = idx; break
                    sk_r |= set(i2.r); sk_w |= set(i2.w)
                if found is None:
                    if c > room or slot < 2 * NJ: break
                else:
                    t2 = FQ[found][1]; del FQ[found]; e(t2); room -= cost_of(t2); continue
            FQ.popleft(); e(t, tag=tag); room -= c
            if tag: pend[tag] = slot
    pend = {}
    rq_pop(0, 8)
    g.log_nops = True
    for n, (f, k, s, first, nm) in enumerate(jobs):
        for rt in range(2):
            slot = 2 * n + rt
            room = budget - 8
            if slot % 72 == 36: stamp(g, 4, 2 + slot // 72, 4, 0)
            if rt == 0:
                assert not any(r[2] == f"x{k}" and (nm[0] in "qF" or "xdone" not in flags and i < 72) for i, r in enumerate(RQ) if r[1] != "flag" and (nm[0] in "qF" or not any(x[2] == "xdone" for x in list(RQ)[:i]))), ("read not issued", nm, k)
                g.wait(vm=f"w{n}", lg=f"x{k}"); room -= 4
            A = vr(ACC + 32 * s + 16 * rt, 16)
            e(f"v_mfma_f32_32x32x16_bf16 {A}, {vr(RING+4*(n%NR))}, {xreg(k, rt)}, {'0' if first else A}")
            if rt == 1 and n + NR < NJ: wload(n + NR); room -= 4
            room -= rq_pop(slot, xrate if slot < 18 else 1)
            fq_pop(slot, room)
    g.log_nops = False
    stamp(g, 4, 11, 4, 0)
    fq_pop(2 * NJ, 10000)
    assert not FQ and not RQ
    stamp(g, 4, 12, 4, 0)
    kernel_tail(g, name)
    return name, 256, K4_LDS
```

```python
from common import *
def k5(g):
    name = "k5_kernel"
    kernel_head(g, name, 576)
    e = g.e
    e("s_load_dwordx2 s[8:9], s[0:1], 64")
    e("s_load_dwordx2 s[12:13], s[0:1], 80")
    e(f"""
    s_lshl_b32 s14, s2, 12
    v_lshlrev_b32 v2, 4, v0
    s_mul_i32 s15, s2, 7282
    s_lshr_b32 s15, s15, 16
    s_mul_i32 s16, s15, 9
    s_sub_u32 s16, s2, s16
    v_and_b32 v3, 31, v0
    v_lshlrev_b32 v4, 3, v3
    s_lshl_b32 s17, s15, 8
    s_add_u32 s17, s17, {WS_MH}
    s_add_u32 s18, s14, {WS_HC}
    s_add_u32 s19, s14, {WS_P}
    s_waitcnt lgkmcnt(0)""")
    srd(g, 4, 12, WS_SIZE)
    if PROF:
        e("v_lshrrev_b32 v60, 6, v0")
        e("v_readfirstlane_b32 s24, v60")
    stamp(g, 5, 0, 4, 60, 24)
    for j in range(8):
        if j: e(f"s_add_u32 s19, s19, {64*36864}")
        e(f"buffer_load_dwordx4 {vr(8+4*j)}, v2, s[4:7], s19 offen", tag=f"p{j}")
    e("buffer_load_dwordx4 v[40:43], v2, s[4:7], s18 offen", tag="h")
    e("buffer_load_dwordx2 v[44:45], v4, s[4:7], s17 offen", tag="h")
    e(f"""
    s_mov_b32 s10, 2359296
    s_mov_b32 s11, 0x00020000
    v_mul_u32_u24 v5, 1152, v3
    v_lshrrev_b32 v6, 5, v0
    v_lshl_add_u32 v5, v6, 4, v5
    s_mul_i32 s20, s15, {32*1152}
    s_lshl_b32 s21, s16, 7
    s_add_u32 s20, s20, s21
    s_mov_b32 s22, 0x00003f80
    s_mov_b32 s23, 0x3f800000""")
    for j in range(8):
        g.wait(vm=f"p{j}")
        for d in range(4):
            for h in range(2):
                c = "0" if j == 0 else f"v{48+2*d+h}"
                e(f"v_dot2_f32_bf16 v{48+2*d+h}, v{8+4*j+d}, s{22+h}, {c}")
    g.wait(vm="h")
    for d in range(4):
        for h in range(2): e(f"v_dot2_f32_bf16 v{56+2*d+h}, v{40+d}, s{22+h}, v44")
    for r in range(8): e(f"v_fmac_f32 v{56+r}, v{48+r}, v45")
    for u in range(4): e(f"v_cvt_pk_bf16_f32 v{8+u}, v{56+2*u}, v{56+2*u+1}")
    e("buffer_store_dwordx4 v[8:11], v5, s[8:11], s20 offen")
    stamp(g, 5, 1, 4, 60)
    kernel_tail(g, name)
    return name, 576, 0
```

```python
import sys
from common import *
from k1 import k1
from k2 import k2
from k3 import k3
from k4 import k4
from k5 import k5
def build(out, ks=(k1, k2, k3, k4, k5)):
    g = Gen()
    info = []
    for k in ks: info.append(k(g))
    hdr = "".join(f"; @launch kernel={n} grid=({gr},1,1) block=(256,1,1) lds={l}\n" for n, gr, l in info)
    txt = hdr + '.amdgcn_target "amdgcn-amd-amdhsa--gfx950"\n.text\n' + g.text() + '.section .rodata,"a"\n'
    for n, gr, l in info:
        txt += kdesc(n, 64, 64) if n == "k5_kernel" else kdesc(n)
    open(out, "w").write(txt)
    print("wrote", out, len(txt), "bytes; nops", g.nops)
if __name__ == "__main__":
    build(sys.argv[1] if len(sys.argv) > 1 else f"cdna_kernels/{NAME}.s")
```

```python
from asmgen import *
import math, struct
NAME = "sequential_preLN__grouped_kv_mqa__dense_activation_silu__prompt"
WS_Q = 0x0
WS_KV = 0x300000
WS_KL = 0x330000
WS_FL = 0x338000
WS_MX = 0x339000
WS_MH = 0x33C000
WS_SS = 0x340000
WS_O = 0x400000
WS_HC = 0x700000
WS_WO = 0xA00000
WO_J = 86016
WS_W = 0xB00000
WS_P = 0x1600000
WS_SIZE = 268435456
QREC = 1536
def f2u(x): return struct.unpack("<I", struct.pack("<f", x))[0]
def fhex(x): return "0x%08x" % f2u(x)
CQ = (18 ** -0.5) * math.log2(math.e)

def srd(g, s, lo, size):
    g.e(f"""
    s_mov_b32 s{s}, s{lo}
    s_mov_b32 s{s+1}, s{lo+1}
    s_mov_b32 s{s+2}, {size}
    s_mov_b32 s{s+3}, 0x00020000""")

def kernel_head(g, name, nwg):
    g.raw(f".globl {name}\n.p2align 8\n.type {name},@function\n{name}:")
    g.st = {}; g.vmq = []; g.lgq = []
    g.e(f"s_cmp_ge_u32 s2, {nwg}")
    g.e(f"s_cbranch_scc1 {name}_end")

def kernel_tail(g, name):
    g.label(f"{name}_end")
    g.e("s_endpgm")

def kdesc(name, nv=512, acc=256):
    return f""".p2align 6
.amdhsa_kernel {name}
  .amdhsa_next_free_vgpr {nv}
  .amdhsa_next_free_sgpr 102
  .amdhsa_accum_offset {acc}
  .amdhsa_group_segment_fixed_size 0
  .amdhsa_kernarg_size 88
  .amdhsa_user_sgpr_count 2
  .amdhsa_user_sgpr_kernarg_segment_ptr 1
  .amdhsa_system_sgpr_workgroup_id_x 1
.end_amdhsa_kernel
"""

def map_imajor(g, si, sj, st):
    g.e(f"s_and_b32 s{si}, s2, 31")
    g.e(f"s_lshr_b32 s{sj}, s2, 5")

WS_DBG = 0x8000000
def dump(g, regs, srdb=36, tmp=255, end=True):
    e = g.e
    e("s_waitcnt vmcnt(0) lgkmcnt(0)")
    e("s_nop 15")
    e(f"v_and_b32 v{tmp}, 63, v0")
    e(f"v_lshrrev_b32 v{tmp-1}, 6, v0")
    e(f"v_lshl_add_u32 v{tmp-1}, s2, 2, v{tmp-1}")
    e(f"v_mul_u32_u24 v{tmp-1}, {256*len(regs)}, v{tmp-1}")
    e(f"v_lshl_add_u32 v{tmp}, v{tmp}, 2, v{tmp-1}")
    e(f"v_add_u32 v{tmp}, {WS_DBG}, v{tmp}")
    for k, r in enumerate(regs):
        e(f"buffer_store_dword {r}, v{tmp}, s[{srdb}:{srdb+3}], 0 offen")
        e(f"v_add_u32 v{tmp}, 256, v{tmp}")
    if end: e("s_endpgm")

import os
PROF = os.environ.get("PROF")
def stamp(g, kid, idx, srdb, vt, wreg=16):
    if not PROF: return
    e = g.e
    e("s_memtime s[0:1]")
    e("s_memrealtime s[12:13]")
    if idx == 0:
        e("s_lshl_b32 s3, s2, 2")
        e(f"s_add_u32 s3, s3, s{wreg}")
        e("s_lshl_b32 s3, s3, 7")
        e(f"s_add_u32 s3, s3, {WS_DBG + kid*0x100000}")
    e("s_waitcnt lgkmcnt(0)"); g.lgq = []
    e(f"v_mov_b32 v{vt}, s0")
    e(f"v_mov_b32 v{vt+1}, s12")
    g.raw(f"    buffer_store_dwordx2 v[{vt}:{vt+1}], off, s[{srdb}:{srdb+3}], s3 offset:{8*idx}")

class LStamp:
    def __init__(self, g, kid, srdb, vt, sbase):
        self.g, self.kid, self.srdb, self.vt, self.sb, self.l = g, kid, srdb, vt, sbase, []
    def __call__(self, idx):
        if not PROF: return
        s = self.sb + 2 * len(self.l); self.l.append(idx)
        self.g.raw(f"    s_memrealtime s[{s}:{s+1}]")
    def flush(self):
        if not PROF: return
        e = self.g.e
        e("s_waitcnt lgkmcnt(0)")
        for k, idx in enumerate(self.l):
            e(f"v_mov_b32 v{self.vt}, 0")
            e(f"v_mov_b32 v{self.vt+1}, s{self.sb+2*k}")
            self.g.raw(f"    buffer_store_dwordx2 v[{self.vt}:{self.vt+1}], off, s[{self.srdb}:{self.srdb+3}], s3 offset:{8*idx}")
            e("s_nop 1")

class LS2:
    def __init__(self, g, srdb, vt, m):
        self.g, self.srdb, self.vt, self.m = g, srdb, vt, m
    def __call__(self, idx):
        if not PROF: return
        s = self.m[idx]
        self.g.raw(f"    s_memrealtime s[{s}:{s+1}]")
    def flush(self):
        if not PROF: return
        e = self.g.e
        e("s_waitcnt lgkmcnt(0)")
        for idx, s in self.m.items():
            e(f"v_mov_b32 v{self.vt}, 0")
            e(f"v_mov_b32 v{self.vt+1}, s{s}")
            self.g.raw(f"    buffer_store_dwordx2 v[{self.vt}:{self.vt+1}], off, s[{self.srdb}:{self.srdb+3}], s3 offset:{8*idx}")
            e("s_nop 1")
```

```python
from common import *
from collections import deque
XI, SC = 0, 73728
K4_LDS = SC + 65536
XV, ACC, F, T, RING, NR = 16, 48, 112, 128, 136, 18
SUM, BASE, PT = 208, 224, 240
SOFF = 20
QB, RB, LB = 62, 65, 73
PJ = 64 * 36864
LOG2E = math.log2(math.e)

def xreg(kap, rt):
    if 4 <= kap < 8: return vr(XV + 8 * (kap - 4) + 4 * rt)
    k = kap if kap < 4 else kap - 4
    return ar(8 * k + 4 * rt)

def cost_of(t):
    op = t.split()[0]
    if op.startswith(TRANS): return 8
    if op.startswith("ds_write_b128"): return 12
    if op.startswith("v_mfma"): return 8
    return 4

def k4(g, budget=32, xrate=2):
    name = "k4_kernel"
    kernel_head(g, name, 256)
    e = g.e
    e("s_load_dwordx2 s[12:13], s[0:1], 80")
    e("s_load_dwordx2 s[8:9], s[0:1], 64")
    LJ = int(os.environ.get("K4LJ", "2"))
    m = (8 >> LJ) - 1
    e(f"""
    s_and_b32 s15, s2, {m}
    s_lshl_b32 s15, s15, {LJ}
    s_lshr_b32 s14, s2, 3
    s_and_b32 s17, s14, {(1 << LJ) - 1}
    s_or_b32 s15, s15, s17
    s_lshr_b32 s14, s14, {LJ}
    s_and_b32 s17, s14, {m}
    s_lshr_b32 s14, s14, {3 - LJ}
    s_lshl_b32 s14, s14, 3
    s_or_b32 s14, s14, s17
    s_and_b32 s17, s2, {7 & ~m}
    s_or_b32 s14, s14, s17""")
    e(f"""
    v_lshrrev_b32 v2, 6, v0
    v_and_b32 v1, 63, v0
    s_mul_i32 s17, s14, 73728
    v_readfirstlane_b32 s16, v2
    v_lshlrev_b32 v2, 4, v1
    v_lshlrev_b32 v9, 5, v1
    s_lshl_b32 s18, s15, 2
    s_add_u32 s18, s18, s16
    s_mul_i32 s18, s18, {324*1024}
    s_add_u32 s{SOFF}, s18, {WS_W}
    s_mul_i32 s19, s16, 9216
    s_add_u32 s10, s17, s19
    s_add_u32 s10, s10, {WS_HC}
    s_lshl_b32 s11, s14, 12
    s_add_u32 s11, s11, {WS_SS}
    v_add_u32 v13, 4096, v2
    s_waitcnt lgkmcnt(0)""")
    srd(g, 4, 12, WS_SIZE)
    stamp(g, 4, 0, 4, 14)
    for k0 in range(0, 9, 4):
        for rt in range(2):
            e(f"s_add_u32 m0, s19, {XI + 36864*rt + 1024*k0}")
            e(f"s_add_u32 s18, s10, {36864*rt + 1024*k0}")
            for k in range(k0, min(k0 + 4, 9)):
                e(f"buffer_load_dwordx4 v2, s[4:7], s18 offen offset:{1024*(k-k0)} lds", tag="x")
    for rt in range(2):
        for h in range(2):
            e(f"buffer_load_dwordx4 {vr(F+8*rt+4*h)}, v9, s[4:7], s11 offen offset:{2048*rt+16*h}", tag="ss")
    early = [k for k in range(36) if k % 9 in (0, 1, 2, 3, 8)]
    oth45 = [k for k in range(9, 36) if k % 9 in (4, 5)]
    oth67 = [k for k in range(9, 36) if k % 9 in (6, 7)]
    jobs = []; start = {}
    def tile(nm, fbase, ks, s, first=True):
        start[nm] = 2 * len(jobs)
        for n, k in enumerate(ks): jobs.append((fbase + k, k, s, first and n == 0, nm))
    tile("E0", 0, range(9), 0); tile("E1", 9, range(9), 1)
    tile("p0", 18, range(36), 0); tile("p1", 54, range(36), 1); tile("p2", 90, range(36), 0)
    p3o = [4, 5] + early + oth45 + [6, 7] + oth67
    tile("p3", 126, p3o, 1)
    W2 = 162
    tile("q0", W2 + 18, early + [4, 5] + oth45, 0)
    tile("q1", W2 + 54, early[:12], 1)
    tile("q0b", W2 + 18, [6, 7] + oth67, 0, first=False)
    tile("q1b", W2 + 54, [k for k in range(36) if k not in early[:12]], 1, first=False)
    tile("q2", W2 + 90, range(36), 0); tile("q3", W2 + 126, range(36), 1)
    tile("F0", W2 + 0, range(9), 0); tile("F1", W2 + 9, range(9), 1)
    NJ = len(jobs); assert NJ == 324
    def wload(n):
        f = jobs[n][0]
        e(f"buffer_load_dwordx4 {vr(RING+4*(n%NR))}, v{2 if f % 8 < 4 else 13}, s[4:7], s{SOFF+f//8} offen offset:{1024*(f%4)}", tag=f"w{n}")
    for n in range(NR):
        if n % 8 == 0 and n: e(f"s_add_u32 s{SOFF+n//8}, s{SOFF}, {1024*n}")
        wload(n)
    for q in range((NR + 7) // 8, 41): e(f"s_add_u32 s{SOFF+q}, s{SOFF}, {8192*q}")
    for q in range(4):
        e(f"""
        s_add_u32 s18, s16, {q}
        s_and_b32 s18, s18, 3
        s_mul_i32 s18, s18, 9216
        v_add_u32 v{3+q}, s18, v2""")
    e(f"""
    s_lshl_b32 s18, s16, 12
    s_add_u32 s18, s18, {SC}
    v_add_u32 v7, s18, v2
    s_lshl_b32 s18, s16, 14
    s_add_u32 s18, s18, {SC}
    v_add_u32 v8, s18, v2
    v_add_u32 v12, 36864, v2
    s_mov_b32 s10, 2359296
    s_mov_b32 s11, 0x00020000
    s_add_u32 s18, s17, {WS_P}
    s_mul_i32 s19, s15, {PJ}
    s_add_u32 s19, s19, s18
    s_and_b32 s90, s16, 1
    s_lshl_b32 s90, s90, 11
    s_add_u32 s19, s19, s90
    s_lshr_b32 s90, s16, 1
    s_add_u32 s91, s90, s15""")
    for q in range(4):
        e(f"""
        s_add_u32 s92, s91, {2*q}
        s_and_b32 s92, s92, 7""")
        if q == 0:
            e("s_cmp_eq_u32 s90, 0")
            e("s_cselect_b32 s92, 8, s92")
        e(f"""
        s_lshl_b32 s92, s92, 12
        s_add_u32 s{QB+q}, s19, s92""")
    e(f"""
    s_lshl_b32 s90, s15, 2
    s_add_u32 s90, s90, s16
    s_lshl_b32 s91, s90, 10
    s_add_u32 s19, s18, s91""")
    for d in range(1, 8):
        e(f"""
        s_sub_u32 s92, s15, {d}
        s_and_b32 s92, s92, 7
        s_mul_i32 s92, s92, {PJ}
        s_add_u32 s{RB+d}, s19, s92""")
    e(f"""
    s_add_u32 s75, s17, s91
    s_add_u32 s75, s75, {WS_HC}
    s_lshl_b32 s79, s90, 5
    s_add_u32 s79, s79, s17
    s_and_b32 s90, s15, 1
    s_lshr_b32 s91, s15, 1
    s_mul_i32 s92, s90, 36
    s_add_u32 s92, s92, s91
    s_add_u32 s92, s92, 32
    s_lshl_b32 s92, s92, 10
    s_lshl_b32 s93, s16, 7
    s_add_u32 s92, s92, s93
    s_add_u32 s{LB}, s18, s92
    s_add_u32 s{LB+1}, s{LB}, {4*PJ}
    s_add_u32 s76, s17, s92
    s_add_u32 s76, s76, {WS_HC}
    s_lshl_b32 s77, s14, 9
    s_add_u32 s77, s77, {WS_MH}
    s_lshl_b32 s92, s90, 2
    s_add_u32 s92, s92, s16
    s_lshl_b32 s84, s92, 5
    s_lshl_b32 s93, s92, 6
    s_add_u32 s78, s77, s93
    s_mul_i32 s80, s92, {8*1152}
    s_add_u32 s80, s80, s17
    s_lshl_b32 s91, s91, 5
    s_add_u32 s80, s80, s91
    s_add_u32 s80, s80, 1024
    s_add_u32 s85, s79, 36864
    s_mov_b32 s81, 0x00003f80
    s_mov_b32 s82, 0x3f800000
    s_mov_b32 s83, 0x40000""")
    def xread(k, rt):
        return (f"ds_read_b128 {xreg(k, rt)}, v{3+k//9} offset:{XI + 36864*rt + 1024*(k%9)}", f"x{k}")
    def hwrite(src, k, rt):
        return f"ds_write_b128 v3, {src} offset:{XI + 36864*rt + 1024*k}"
    flags = set()
    FQ = deque()
    RQ = deque()
    def fq(t, at=0, tag=None): FQ.append((at, t, tag))
    def barrier(flag, at=0, need=None):
        def f():
            g.wait_all(vm=False); e("s_barrier"); flags.add(flag)
        FQ.append((at, f, need))
    def silu8(R, rt, dst, at=0, cat=0):
        for h in range(2):
            b = R + 4 * h; t = T + 4 * h
            for r in range(4): fq(f"v_mul_f32 v{t+r}, v{b+r}, v{10+rt}", at)
            for r in range(4): fq(f"v_exp_f32 v{t+r}, v{t+r}", at)
            for r in range(4): fq(f"v_add_f32 v{t+r}, 1.0, v{t+r}", at)
            for r in range(4): fq(f"v_rcp_f32 v{t+r}, v{t+r}", at)
            for r in range(4): fq(f"v_mul_f32 v{b+r}, v{b+r}, v{t+r}", at)
        for u in range(4): fq(f"v_cvt_pk_bf16_f32 v{dst+u}, v{R+2*u}, v{R+2*u+1}", max(at, cat))
    def epart(E, s, at):
        for rt in range(2):
            for A in range(2):
                for h in range(2):
                    fq(f"ds_write_b128 v7, {vr(ACC+32*s+16*rt+8*A+4*h)} offset:{16384*(2*E+A)+2048*rt+1024*h}", at)
    def fin_sum(at):
        S1 = ACC + 32
        for rt in range(2):
            for src in range(4):
                for h in range(2):
                    fq(f"ds_read_b128 {vr(S1+8*src+4*h)}, v8 offset:{4096*src+2048*rt+1024*h}", at, tag=f"f{rt}")
            if rt == 1:
                pass
            fq(("waitlg", f"f{rt}"), at)
            for r in range(8): fq(f"v_add_f32 v{F+8*rt+r}, v{S1+r}, v{S1+8+r}", at)
            for r in range(8): fq(f"v_add_f32 v{S1+16+r}, v{S1+16+r}, v{S1+24+r}", at)
            for r in range(8): fq(f"v_add_f32 v{F+8*rt+r}, v{F+8*rt+r}, v{S1+16+r}", at)
    def ostore(R, rt, q, a, at):
        for u in range(4): fq(f"v_cvt_pk_bf16_f32 v{R+u}, v{R+2*u}, v{R+2*u+1}", at)
        for u in range(4): fq(f"v_min_u32 v{R+u}, -2, v{R+u}", at)
        fq(f"buffer_store_dwordx4 {vr(R)}, v{[2,12][rt]}, s[4:7], s{QB+q} offen offset:{1024*a} sc1", at, tag="st")
    slow = []
    ls = LStamp(g, 4, 4, 0, 86)
    def pl(R, d): return [f"buffer_load_dwordx4 {vr(R+4*rt)}, v{[2,12][rt]}, s[4:7], s{RB+d} offen sc1" for rt in range(2)]
    def chk(R, tmp):
        l = [f"v_max3_u32 v{tmp}, v{R}, v{R+1}, v{R+2}"]
        for k in range(3, 15, 2): l.append(f"v_max3_u32 v{tmp}, v{tmp}, v{R+k}, v{R+k+1}")
        l.append(f"v_max_u32 v{tmp}, v{tmp}, v{R+15}")
        return l
    def pcheck(nm, R, loads, at):
        fq(("waitvm", nm), at)
        for t in chk(R, 15): fq(t, at)
        def br():
            e("v_cmp_eq_u32 vcc, -1, v15")
            e(f"s_cbranch_vccnz k4_slow{nm}")
            g.label(f"k4_back{nm}")
            if PROF: e(f"s_mov_b32 s{20+'ABCD'.index(nm)}, s83")
        slow.append((nm, R, loads))
        fq(br, at)
    def padd(dst, R, n, first, at):
        for d in range(n):
            for h in range(2): fq(f"v_dot2_f32_bf16 v{dst+2*d+h}, v{R+d}, s{81+h}, {first if first else 'v%d' % (dst+2*d+h)}", at)
    fq(("waitvm", "ss"))
    for rt in range(2):
        b = F + 8 * rt
        for r in range(4): fq(f"v_add_f32 v{b+r}, v{b+r}, v{b+4+r}")
        fq(f"v_add_f32 v{b}, v{b}, v{b+1}"); fq(f"v_add_f32 v{b+2}, v{b+2}, v{b+3}")
    fq(f"v_add_f32 v10, v{F}, v{F+2}"); fq(f"v_add_f32 v11, v{F+8}, v{F+10}")
    fq(f"v_mov_b32 v14, {fhex(1e-5)}")
    fq("v_permlane32_swap_b32 v10, v11")
    fq("v_add_f32 v10, v10, v11")
    fq(f"v_fmac_f32 v14, {fhex(1/576)}, v10")
    fq("v_rsq_f32 v14, v14")
    fq(f"v_mul_f32 v10, {fhex(-LOG2E)}, v14")
    fq(f"v_mul_f32 v11, {fhex(-LOG2E)}, v14")
    fq("v_permlane32_swap_b32 v10, v11")
    D = 1
    epart(0, 0, start["E1"] + D)
    epart(1, 1, start["p0"] + D)
    barrier("B2", need="xdone")
    fin_sum(0)
    fq(("deadline", start["p1"]))
    for rt in range(2):
        silu8(F + 8 * rt, rt, F + 8 * rt); fq(hwrite(vr(F + 8 * rt), 8, rt))
    for p in range(4):
        s = p % 2; at = start[["p1", "p2", "p3", "q0"][p]] + D
        for a in range(2):
            for rt in range(2):
                R = ACC + 32 * s + 16 * rt + 8 * a
                dst = R if p < 2 else XV + 8 * (2 * p + a - 4) + 4 * rt
                silu8(R, rt, dst, at, cat=at + 4)
                fq(hwrite(vr(dst), 2 * p + a, rt), at)
        fq(("deadline", start[["p2", "p3", "q0", "q1"][p]]))
        if p >= 1: barrier(f"H{p}")
    def oepi(q, s, at, sp=0):
        for a in range(2):
            for rt in range(2): ostore(ACC + 32 * s + 16 * rt + 8 * a, rt, q, a, at + sp * (2 * a + rt))
    for t in f"""
    v_bfe_u32 v{T+4}, v2, 4, 5
    v_lshlrev_b32 v{T+5}, 3, v{T+4}
    v_mul_u32_u24 v{T}, 1152, v{T+4}
    v_lshrrev_b32 v{T+4}, 9, v2
    v_lshl_add_u32 v{T}, v{T+4}, 4, v{T}
    v_and_b32 v{T+6}, 0x70, v2
    v_bfe_u32 v{T+7}, v2, 7, 1
    v_lshrrev_b32 v{T+4}, 8, v2
    v_lshl_add_u32 v{T+2}, v{T+7}, 9, v{T+6}
    v_mul_u32_u24 v{T+1}, {PJ}, v{T+4}
    v_add_u32 v{T+1}, v{T+1}, v{T+2}
    v_lshl_add_u32 v{T+2}, v{T+4}, 2, v{T+2}
    v_mul_u32_u24 v{T+3}, 72, v{T+6}
    v_lshl_add_u32 v{T+3}, v{T+7}, 4, v{T+3}
    v_lshl_add_u32 v{T+3}, v{T+4}, 2, v{T+3}
    v_lshrrev_b32 v{T+4}, 1, v{T+6}
    v_lshrrev_b32 v{T+6}, 2, v{T+6}
    v_add_u32 v{T+6}, s84, v{T+6}
    v_mul_f32 v10, {fhex(-1/LOG2E)}, v10
    v_mul_f32 v11, {fhex(-1/LOG2E)}, v11""".strip().split("\n"): fq(t.strip())
    for rt in range(2): fq(f"buffer_load_dwordx4 {vr(PT+4*rt)}, v{[2,12][rt]}, s[4:7], s75 offen", tag="hc")
    for rt in range(2): fq(f"buffer_load_dword v{PT+8+rt}, v{T+5}, s[4:7], s77 offen offset:{256*rt}", tag="hc")
    fq(f"buffer_load_dword v{PT+10}, v{T+2}, s[4:7], s76 offen", tag="hc")
    fq(f"buffer_load_dword v{PT+11}, v{T+4}, s[4:7], s78 offen", tag="hc")
    fq(f"ds_bpermute_b32 v14, v{T+6}, v14", tag="bp")
    TA, TB, TC, TD = [int(x) for x in os.environ.get("K4T", "30,4,60,4").split(",")]
    oepi(0, 0, start["q1b"] + D, 8)
    fq(("waitvm", "hc"), start["q1b"] + 26); fq(("waitlg", "bp"))
    for rt in range(2): padd(BASE + 8 * rt, PT + 4 * rt, 4, f"v{PT+8+rt}", 0)
    padd(T + 4, PT + 10, 1, f"v{PT+11}", 0)
    fq(("deadline", start["q2"]))
    oepi(1, 1, start["q2"] + D, 8)
    LA = pl(PT, 1) + [f"buffer_load_dwordx4 {vr(PT+8+4*h)}, v{T+1}, s[4:7], s{LB+h} offen sc1" for h in range(2)]
    LBq = pl(F, 2) + pl(F + 8, 3); LC = pl(PT, 4) + pl(PT + 8, 5); LD = pl(F, 6) + pl(F + 8, 7)
    for k, t in enumerate(LA): fq(t, start["q2"] + TA + 2 * k, tag="A")
    fq(("deadline", start["q3"]))
    oepi(2, 0, start["q3"] + D, 3)
    for k, t in enumerate(LBq): fq(t, start["q3"] + TB + k, tag="B")
    pcheck("A", PT, LA, start["q2"] + TA + 2 * NR + 8)
    padd(SUM, PT, 8, "0", 0)
    padd(PT, PT + 8, 4, "0", 0); padd(PT, PT + 12, 4, None, 0)
    for r in range(4): fq(f"v_permlane32_swap_b32 v{PT+r}, v{PT+4+r}")
    for r in range(4): fq(f"v_add_f32 v{PT+r}, v{PT+r}, v{PT+4+r}")
    for r in range(2): fq(f"v_permlane16_swap_b32 v{PT+r}, v{PT+2+r}")
    for r in range(2): fq(f"v_add_f32 v{PT+r}, v{PT+r}, v{PT+2+r}")
    for r in range(2): fq(f"v_fmac_f32 v{T+4+r}, v{PT+r}, v14")
    fq(f"v_cvt_pk_bf16_f32 v{T+4}, v{T+4}, v{T+5}")
    fq(f"buffer_store_dword v{T+4}, v{T+3}, s[8:11], s80 offen", tag="st")
    pcheck("B", F, LBq, start["q3"] + max(TB, 12) + 2 * NR + 4)
    padd(SUM, F, 8, None, 0)
    for k, t in enumerate(LC): fq(t, start["q3"] + TC + k, tag="C")
    padd(SUM, F + 8, 8, None, 0)
    fq(("deadline", start["F0"]))
    oepi(3, 1, start["F0"] + D)
    fq(("deadline", start["F1"]))
    epart(0, 0, start["F1"] + D)
    pcheck("C", PT, LC, start["q3"] + TC + 2 * NR + 2)
    padd(SUM, PT, 8, None, 0)
    for k, t in enumerate(LD): fq(t, 2 * NJ - TD, tag="D")
    padd(SUM, PT + 8, 8, None, 0)
    epart(1, 1, 2 * NJ)
    barrier("B5", 2 * NJ)
    fq(lambda: ls(9))
    for rt in range(2):
        for src in range(4):
            for h in range(2):
                fq(f"ds_read_b128 {vr(ACC+32*rt+8*src+4*h)}, v8 offset:{4096*src+2048*rt+1024*h}", 2 * NJ, tag=f"f{rt}")
    def pk(op, d, a, b, c=None, sel=""):
        fq(f"{op} {vr(d,2)}, {a}, {b}" + (f", {c}" if c else "") + sel)
    for rt in range(2):
        A = ACC + 32 * rt
        fq(("waitlg", f"f{rt}"))
        for r in range(0, 8, 2): pk("v_pk_add_f32", A + r, vr(A + r, 2), vr(A + 8 + r, 2))
        for r in range(0, 8, 2): pk("v_pk_add_f32", A + 16 + r, vr(A + 16 + r, 2), vr(A + 24 + r, 2))
        for r in range(0, 8, 2): pk("v_pk_add_f32", A + r, vr(A + r, 2), vr(SUM + 8 * rt + r, 2))
        for r in range(0, 8, 2): pk("v_pk_add_f32", SUM + 8 * rt + r, vr(A + r, 2), vr(A + 16 + r, 2))
    fq(lambda: ls(10))
    pcheck("D", F, LD, 0)
    fq(lambda: ls(11))
    for rt in range(2):
        padd(SUM + 8 * rt, F + 4 * rt, 4, None, 0); padd(SUM + 8 * rt, F + 8 + 4 * rt, 4, None, 0)
        for r in range(0, 8, 2):
            pk("v_pk_fma_f32", BASE + 8 * rt + r, vr(SUM + 8 * rt + r, 2), "v[10:11]", vr(BASE + 8 * rt + r, 2), f" op_sel:[0,{rt},0] op_sel_hi:[1,{rt},1]")
        for u in range(4): fq(f"v_cvt_pk_bf16_f32 v{BASE+8*rt+u}, v{BASE+8*rt+2*u}, v{BASE+8*rt+2*u+1}")
        fq(f"buffer_store_dwordx4 {vr(BASE+8*rt)}, v{T}, s[8:11], s{[79,85][rt]} offen")
    for k in range(36):
        for rt in range(2): RQ.append((lambda s: True,) + xread(k, rt))
    RQ.append((lambda s: True, "flag", "xdone"))
    p3slot = {k: start["p3"] + 2 * n for n, k in enumerate(p3o)}
    for ks, fl in ((early, "H1"), (oth45, "H2"), (oth67, "H3")):
        for k in ks:
            for rt in range(2):
                RQ.append((lambda s, k=k, rt=rt, fl=fl: fl in flags and s >= p3slot[k] + rt,) + xread(k, rt))
    stamp(g, 4, 13, 4, 0)
    g.wait(vm="x")
    stamp(g, 4, 1, 4, 0)
    e("s_barrier")
    def rq_pop(slot, n):
        c = 0
        while n > 0 and RQ and RQ[0][0](slot):
            _, t, tag = RQ.popleft()
            if t == "flag": flags.add(tag); continue
            e(t, tag=tag); n -= 1; c += 4
        while RQ and RQ[0][1] == "flag": flags.add(RQ.popleft()[2])
        return c
    def fq_pop(slot, room):
        while FQ:
            at, t, tag = FQ[0]
            if at > slot: break
            if callable(t):
                if tag and tag not in flags: break
                if room < 8: break
                FQ.popleft(); t(); room -= 8; continue
            if isinstance(t, tuple):
                if t[0] == "deadline":
                    assert slot < t[1], ("deadline missed", slot, t[1]); FQ.popleft(); print("k4 deadline", t[1], "met at", slot); continue
                if t[0] == "waitlg" and pend.get(t[1], -99) + 6 > slot and slot < 2 * NJ: break
                if room < 4: break
                FQ.popleft()
                if t[0] == "waitlg": g.wait(lg=t[1])
                else: g.wait(vm=t[1])
                room -= 4; continue
            c = cost_of(t)
            if c > room or g.need(Ins(t)) > 0:
                sk_r = set(); sk_w = set(); found = None
                for idx in range(min(len(FQ), 14)):
                    at2, t2, tag2 = FQ[idx]
                    if not isinstance(t2, str): break
                    i2 = Ins(t2)
                    if idx and at2 <= slot and cost_of(t2) <= room and t2.startswith("v_") and g.need(i2) == 0 \
                       and not (set(i2.r) & sk_w) and not (set(i2.w) & (sk_r | sk_w)):
                        found = idx; break
                    sk_r |= set(i2.r); sk_w |= set(i2.w)
                if found is None:
                    if c > room or slot < 2 * NJ: break
                else:
                    t2 = FQ[found][1]; del FQ[found]; e(t2); room -= cost_of(t2); continue
            FQ.popleft(); e(t, tag=tag); room -= c
            if tag: pend[tag] = slot
    pend = {}
    STP = {324: 2, 468: 3, 540: 4, 576: 5, 612: 6, 630: 7}
    rq_pop(0, 8)
    g.log_nops = True
    for n, (f, k, s, first, nm) in enumerate(jobs):
        for rt in range(2):
            slot = 2 * n + rt
            room = budget - 8
            if slot in STP: (ls(STP[slot]) if slot > 540 else stamp(g, 4, STP[slot], 4, 0))
            if rt == 0:
                assert not any(r[2] == f"x{k}" and (nm[0] in "qF" or "xdone" not in flags and i < 72) for i, r in enumerate(RQ) if r[1] != "flag" and (nm[0] in "qF" or not any(x[2] == "xdone" for x in list(RQ)[:i]))), ("read not issued", nm, k)
                g.wait(vm=f"w{n}", lg=f"x{k}"); room -= 4
            A = vr(ACC + 32 * s + 16 * rt, 16)
            e(f"v_mfma_f32_32x32x16_bf16 {A}, {vr(RING+4*(n%NR))}, {xreg(k, rt)}, {'0' if first else A}")
            if rt == 1 and n + NR < NJ: wload(n + NR); room -= 4
            room -= rq_pop(slot, xrate if slot < 18 else 1)
            fq_pop(slot, room)
    g.log_nops = False
    ls(8)
    fq_pop(2 * NJ, 10000)
    assert not FQ and not RQ
    stamp(g, 4, 12, 4, 0)
    ls.flush()
    if PROF:
        for k in range(4):
            e(f"v_mov_b32 v0, s{20+k}")
            e(f"buffer_store_dword v0, off, s[4:7], s3 offset:{112+4*k}")
    e("s_endpgm")
    for nm, R, loads in slow:
        g.label(f"k4_slow{nm}")
        e("s_cmp_eq_u32 s83, 0")
        e(f"s_cbranch_scc1 k4_back{nm}")
        e("s_sub_u32 s83, s83, 1")
        for t in loads: e(t)
        e("s_waitcnt vmcnt(0)")
        for t in chk(R, 15): e(t)
        e("v_cmp_eq_u32 vcc, -1, v15")
        e(f"s_cbranch_vccnz k4_slow{nm}")
        e(f"s_branch k4_back{nm}")
    kernel_tail(g, name)
    return name, 256, K4_LDS
```

```python
from common import *
from p1 import p1_issue, p1_compute, p1_slow, Q as P1Q
QM, QL, KL, S, P = 16, 48, 80, 96, 128
KVR = 128
BMAX2 = 40.0 * 40.0
RNT = os.environ.get("K2NT", "")
RSC = os.environ.get("K2SC", " sc1")

STG = 98304 + 1024
K2_LDS = STG + 5 * 9216
RT = 144
DA, DB = 80, 89

def w_unit(g, su, srdb, va, sso, D):
    e = g.e
    e(f"""
    s_cmp_ge_u32 s{su}, 576
    s_cselect_b32 s49, 1, 0
    s_cselect_b32 s{srdb}, s78, s76
    s_cselect_b32 s{srdb+1}, s79, s77
    s_mov_b32 s{srdb+2}, 5308416
    s_mov_b32 s{srdb+3}, 0x00020000
    s_mov_b32 s50, 9216
    s_cmov_b32 s50, 1152
    s_mov_b32 s52, 1152
    s_cmov_b32 s52, {576*1152}
    s_cselect_b32 s46, 576, 0
    s_sub_u32 s46, s{su}, s46
    s_mul_i32 s47, s46, 911
    s_lshr_b32 s47, s47, 16
    s_mul_i32 s48, s47, 72
    s_sub_u32 s48, s46, s48
    s_and_b32 s46, s48, 1
    s_lshr_b32 s48, s48, 1
    s_mul_i32 s51, s48, s50
    s_lshl_b32 s51, s51, 4
    s_mul_i32 s52, s52, s47
    s_add_u32 s51, s51, s52
    s_mul_i32 s52, s46, 576
    s_add_u32 s{sso}, s51, s52
    v_mul_lo_u32 v7, v4, s50
    v_lshl_add_u32 v{va}, v5, 4, v7""")
    e(f"""
    s_lshr_b32 s51, s48, 3
    s_add_u32 s51, s51, s48
    s_mul_i32 s52, s48, 9
    s_sub_u32 s52, s52, {9*32-8}
    s_cmp_ge_u32 s48, 32
    s_cselect_b32 s51, s52, s51
    s_cmp_eq_u32 s49, 1
    s_cselect_b32 s48, s51, s48
    s_mul_i32 s46, s46, 9
    v_add_u32 v7, s46, v1
    v_and_b32 v8, 1, v7
    v_lshrrev_b32 v9, 1, v7
    v_subrev_u32 v9, s47, v9
    v_and_b32 v9, 7, v9
    v_cmp_gt_u32 vcc, 16, v7
    v_cmp_eq_u32 s[52:53], 0, v9
    v_lshrrev_b32 v10, 2, v7
    v_and_b32 v11, 3, v7
    v_cndmask_b32 v9, 0, v9, vcc
    s_and_b64 s[52:53], s[52:53], vcc
    s_not_b64 vcc, vcc
    s_cmp_eq_u32 s49, 1
    s_cselect_b64 s[52:53], s[52:53], vcc
    s_cselect_b64 vcc, -1, 0
    v_and_b32 v12, 1, v9
    v_lshl_add_u32 v12, v12, 1, v8
    v_lshrrev_b32 v13, 1, v9
    v_cndmask_b32 v10, v10, v12, vcc
    v_cndmask_b32 v11, v11, v13, vcc
    v_mul_u32_u24 v12, 9, v10
    v_sub_u32 v12, s48, v12
    v_add_u32 v13, 36, v12
    v_min_u32 v12, v12, v13
    v_mad_u32_u24 v12, v11, 36, v12
    v_mul_u32_u24 v13, 324, v10
    v_add3_u32 v12, v12, v13, 18
    s_mul_i32 s51, s48, 57
    s_lshr_b32 s51, s51, 9
    s_mul_i32 s51, s51, 315
    s_add_u32 s51, s51, s48
    v_mad_u32_u24 v13, v8, 9, s51
    s_mul_i32 s51, s47, {4*324}
    s_mul_i32 s50, s49, 162
    s_add_u32 s51, s51, s50
    s_add_u32 s51, s51, {WS_W//1024}
    v_cndmask_b32 v12, v12, v13, s[52:53]
    v_add_lshl_u32 v12, v12, s51, 10""")
    for n in range(9): e(f"v_readlane_b32 s{D+n}, v12, {n}")

def repack_setup(g):
    e = g.e
    e(f"""
    v_lshrrev_b32 v4, 2, v1
    v_and_b32 v5, 3, v1
    s_lshl_b32 s54, s2, 2
    s_add_u32 s54, s54, s16
    s_mul_i32 s61, s16, 9216
    s_add_u32 s61, s61, {STG}""")
    w_unit(g, 54, 24, 252, 44, DA)
    e(f"""
    v_and_b32 v7, 1, v1
    v_bfe_u32 v8, v1, 1, 1
    v_lshlrev_b32 v7, 4, v7
    v_lshl_add_u32 v7, v8, 3, v7
    v_bfe_u32 v8, v1, 4, 1
    v_lshl_add_u32 v7, v8, 5, v7
    v_bfe_u32 v8, v1, 2, 2
    v_lshl_add_u32 v7, v8, 6, v7
    v_lshrrev_b32 v8, 5, v1
    v_lshl_add_u32 v7, v8, 9, v7
    v_add_u32 v244, s61, v7
    v_add_u32 v245, {STG + 4*9216}, v7
    s_mov_b32 s60, 0
    s_and_b32 s54, s2, 3
    s_cmp_eq_u32 s54, s16
    s_cbranch_scc0 k2_rs_done
    s_cmp_lt_u32 s2, 128
    s_cbranch_scc0 k2_rs_o
    s_mov_b32 s60, 1
    s_add_u32 s54, s2, 1024""")
    w_unit(g, 54, 28, 253, 45, DB)
    e("s_branch k2_rs_done")
    g.label("k2_rs_o")
    e(f"""
    s_cmp_lt_u32 s2, 200
    s_cbranch_scc0 k2_rs_done
    s_mov_b32 s60, 2
    s_mov_b32 s28, s72
    s_mov_b32 s29, s73
    s_mov_b32 s30, 663552
    s_mov_b32 s31, 0x00020000
    s_sub_u32 s46, s2, 128
    s_lshr_b32 s48, s46, 1
    s_and_b32 s46, s46, 1
    s_mul_i32 s45, s48, {18*1152}
    s_mul_i32 s50, s48, {144*1152}
    s_sub_u32 s50, s50, {(144*32-16)*1152}
    s_cmp_ge_u32 s48, 32
    s_cselect_b32 s45, s50, s45
    s_mov_b32 s50, 2304
    s_cmov_b32 s50, {18*1152}
    s_mul_i32 s51, s46, 576
    s_add_u32 s45, s45, s51
    v_lshrrev_b32 v7, 1, v4
    v_mul_lo_u32 v7, v7, s50
    v_and_b32 v8, 1, v4
    v_mul_u32_u24 v8, 1152, v8
    v_add_u32 v7, v7, v8
    v_lshl_add_u32 v253, v5, 4, v7
    v_mul_u32_u24 v8, 144, v5
    v_add_u32 v243, v7, v8
    s_mul_i32 s50, s48, 2368
    s_add_u32 s50, s50, {WS_WO}
    s_mul_i32 s51, s46, {4*WO_J}
    s_add_u32 s{DB}, s50, s51
    s_add_u32 s{DB+1}, s{DB}, {WO_J}
    s_add_u32 s{DB+2}, s{DB}, {2*WO_J}
    s_add_u32 s{DB+3}, s{DB}, {3*WO_J}
    s_lshl_b32 s51, s46, 4
    s_add_u32 s{DB+4}, s50, s51
    s_add_u32 s{DB+5}, s{DB+4}, {4*WO_J}
    v_bfe_u32 v7, v1, 2, 1
    v_bfe_u32 v8, v1, 4, 1
    v_lshl_add_u32 v7, v8, 1, v7
    v_mul_u32_u24 v7, {WO_J}, v7
    v_bfe_u32 v8, v1, 3, 1
    v_lshl_add_u32 v7, v8, 7, v7
    v_lshrrev_b32 v8, 5, v1
    v_lshl_add_u32 v7, v8, 6, v7
    v_lshl_add_u32 v242, v5, 4, v7
    v_mul_u32_u24 v7, {WO_J}, v5
    v_lshl_add_u32 v7, v8, 5, v7
    v_and_b32 v8, 7, v4
    v_lshl_add_u32 v241, v8, 1, v7""")
    g.label("k2_rs_done")

def dmaA(n):
    return [(f"s_add_u32 m0, s61, {960*n}", None),
            (f"buffer_load_dwordx4 v252, s[24:27], s44 offen offset:{64*n}{RNT} lds", "ra")]
def slotB_load(g):
    e = g.e
    q = list(g.vmq)
    B = STG + 4 * 9216
    e("s_cmp_eq_u32 s60, 1")
    e("s_cbranch_scc0 k2_bl_o")
    for n in range(9):
        e(f"s_mov_b32 m0, {B + 960*n}")
        e(f"buffer_load_dwordx4 v253, s[28:31], s45 offen offset:{64*n}{RNT} lds")
    e("s_branch k2_bl_done")
    g.label("k2_bl_o")
    e("s_cmp_eq_u32 s60, 2")
    e("s_cbranch_scc0 k2_bl_done")
    for n in range(9):
        o = 144 * (n // 2) + 64 * (n % 2) if n < 8 else 128
        e(f"s_mov_b32 m0, {B + 1024*n - o}")
        e(f"buffer_load_dwordx4 v{253 if n < 8 else 243}, s[28:31], s45 offen offset:{o}{RNT} lds")
    g.label("k2_bl_done")
    g.vmq = q
def trread(va, n, R):
    return [(f"ds_read_b64_tr_b16 {vr(R,2)}, v{va} offset:{1024*n}", f"tr{n}"),
            (f"ds_read_b64_tr_b16 {vr(R+2,2)}, v{va} offset:{1024*n+256}", f"tr{n}")]
def slotB_store(g):
    e = g.e
    q = list(g.vmq); lq = list(g.lgq)
    e("s_cmp_eq_u32 s60, 0")
    e("s_cbranch_scc1 k2_bs_done")
    for n in range(9):
        for t, _ in trread(245, n, RT + 4 * n): e(t)
    e("s_cmp_eq_u32 s60, 1")
    e("s_cbranch_scc0 k2_bs_o")
    for n in range(9):
        e(f"s_waitcnt lgkmcnt({min(15, 16-2*n)})")
        e(f"buffer_store_dwordx4 {vr(RT+4*n)}, v2, s[36:39], s{DB+n} offen{RSC}")
    e("s_branch k2_bs_done")
    g.label("k2_bs_o")
    e(f"v_add_u32 v240, {STG + 4*9216}, v2")
    for n in range(9): e(f"ds_read_b128 {vr(RT+36+4*n)}, v240 offset:{1024*n}")
    e(f"s_waitcnt lgkmcnt(9)")
    for n in range(8):
        e(f"buffer_store_dwordx4 {vr(RT+4*n)}, v2, s[36:39], s{DB+n//2} offen offset:{1024*(n%2)}{RSC}")
    e(f"buffer_store_dwordx4 {vr(RT+32)}, v242, s[36:39], s{DB} offen offset:2048{RSC}")
    e(f"s_waitcnt lgkmcnt(0)")
    e(f"v_mov_b32 v240, 0")
    for d in range(36): e(f"v_dot2_f32_bf16 v240, v{RT+36+d}, s42, v240")
    for ctl in ("quad_perm:[1,0,3,2]", "quad_perm:[2,3,0,1]"):
        e(f"v_add_f32_dpp v240, v240, v240 {ctl} row_mask:0xf bank_mask:0xf")
    e(f"""
    v_mul_f32 v240, {fhex(1/576)}, v240
    v_cvt_pk_bf16_f32 v240, v240, v240
    buffer_store_short v240, v241, s[36:39], s{DB+4} offen offset:2304{RSC}
    buffer_store_short v240, v241, s[36:39], s{DB+5} offen offset:2304{RSC}""")
    g.label("k2_bs_done")
    g.vmq = q; g.lgq = lq

def k2(g):
    name = "ka_kernel"
    kernel_head(g, name, 256)
    e = g.e
    p1_issue(g)
    e("""
    v_lshlrev_b32 v2, 4, v1
    v_and_b32 v6, 31, v1
    v_mov_b32 v7, 18
    v_cmp_eq_u32 vcc, 22, v6
    v_lshrrev_b32 v8, 5, v1
    v_mul_u32_u24 v8, 320, v8
    v_cndmask_b32 v6, v6, v7, vcc
    v_mov_b32 v7, 0x7ffffff0
    v_cmp_gt_u32 vcc, 19, v6
    v_lshl_add_u32 v3, v6, 4, v8
    v_cndmask_b32 v3, v7, v3, vcc""")
    for pp in range(4):
        e(f"""
        s_add_u32 s18, s16, {pp+1}
        s_and_b32 s{68+pp}, s18, 3""")
    e(f"""
    s_mul_i32 s43, s16, {16*2304}
    s_add_u32 s43, s43, {WS_KV}
    s_lshl_b32 s21, s16, 12
    s_add_u32 s21, s21, {WS_KL}""")
    def kvload(t):
        l = []
        b = KVR + 12 * (t % 8); o = 2304 * (t % 2)
        l.append((f"buffer_load_dwordx4 {ar(b)}, v2, s[36:39], s43 offen offset:{o} sc1", f"kv{t}"))
        l.append((f"buffer_load_dwordx4 {ar(b+4)}, v3, s[36:39], s43 offen offset:{o+1024} sc1", f"kv{t}"))
        l.append((f"buffer_load_dwordx4 {ar(b+8)}, v3, s[36:39], s43 offen offset:{o+1664} sc1", f"kv{t}"))
        if t % 2 == 1: l.append((f"s_add_u32 s43, s43, 4608", None))
        return l
    repack_setup(g)
    e(f"""
    s_lshl_b32 s62, s2, 2
    s_add_u32 s62, s62, s16
    s_mul_i32 s62, s62, 18432
    s_add_u32 s62, s62, {WS_P}
    v_mov_b32 v236, -1
    v_mov_b32 v237, -1
    v_mov_b32 v238, -1
    v_mov_b32 v239, -1""")
    PA = 96
    XQ = {}
    for k in range(9): XQ[2 + 4 * k] = dmaA(k)
    for k in range(18):
        n = 4 * k + 4 if k < 12 else 4 * k + 4 + 2 * (k - 11)
        n = 12 + 6 * k
        while n in XQ or n % 8 == 1 or n >= PA and (n - PA) % 2 == 0: n += 1
        XQ[n] = [(f"buffer_store_dwordx4 v[236:239], v2, s[36:39], s62 offen offset:{1024*(k%4)} sc1", "po")]
        if k % 4 == 3: XQ[n].append(("s_add_u32 s62, s62, 4096", None))
    for k in range(10):
        n = PA + 2 * k; XQ[n] = []
        if k: XQ[n].append((f"buffer_store_dwordx4 {vr(RT+4*k-4)}, v2, s[36:39], s{DA+k-1} offen{RSC}", ("st", f"tr{k-1}")))
        if k < 9: XQ[n] += trread(244, k, RT + 4 * k)
    print(sorted(XQ))
    for pp in range(3):
        e(f"""
        s_lshl_b32 s17, s{68+pp}, 3
        s_add_u32 s17, s17, s16
        s_mul_i32 s17, s17, 3072
        v_add_u32 v{246+pp}, s17, v2
        s_lshl_b32 s17, s16, 3
        s_add_u32 s17, s17, s{68+pp}
        s_mul_i32 s17, s17, 3072
        v_add_u32 v{249+pp}, s17, v2""")
    def kvloads():
        e(f"buffer_load_dwordx4 {vr(KL)}, v2, s[36:39], s21 offen sc1", tag="kv0")
        for t in range(8):
            for ins, tag in kvload(t): e(ins, tag=tag)
            if t in (1, 2, 3):
                e(f"buffer_load_dwordx4 {vr(KL+4*t)}, v2, s[36:39], s21 offen offset:{1024*t} sc1", tag=f"kv{t+1}")
    P1Q['kvloads'] = kvloads
    p1_compute(g)
    e("""
    v_mov_b32 v14, v15
    v_permlane32_swap_b32 v14, v15
    v_max_u32 v15, v14, v15
    v_mov_b32 v14, v15
    v_permlane16_swap_b32 v14, v15
    v_max_u32 v15, v14, v15""")
    for sh in (8, 4, 2, 1):
        e(f"v_max_u32_dpp v15, v15, v15 row_ror:{sh} row_mask:0xf bank_mask:0xf")
    g.wait_all(vm=False)
    e("s_mov_b32 exec_lo, 0")
    for q in range(8):
        e(f"v_mul_f32 v{QL+4*q}, v{QL+4*q}, v15")
    e(f"v_max3_f32 v14, v{QL}, v{QL+4}, v{QL+8}")
    e(f"v_max3_f32 v14, v14, v{QL+12}, v{QL+16}")
    e(f"v_max3_f32 v14, v14, v{QL+20}, v{QL+24}")
    e(f"v_max_f32 v14, v14, v{QL+28}")
    e(f"v_cmp_nge_f32 vcc, {fhex(BMAX2)}, v14")
    for q in range(8): e(f"v_sqrt_f32 v{QL+4*q}, v{QL+4*q}")
    for q in range(8): e(f"v_cvt_pk_bf16_f32 v{QL+4*q}, -v{QL+4*q}, 0")
    e("s_mov_b32 exec_lo, -1")
    for q in range(8):
        e(f"v_mov_b32 v{QL+4*q+1}, 0")
        e(f"v_mov_b32 v{QL+4*q+2}, 0")
    e("s_cbranch_vccnz k2_fallback")
    g.label("k2_main")
    for q in range(8): e(f"v_mov_b32 v{QL+4*q+3}, v{QL+4*q}")

    def qk(n):
        t, q, u = n // 8, n % 8, n % 2
        b = KVR + 12 * (t % 8); D = vr(S + 16 * u, 16)
        return [f"v_mfma_f32_32x32x16_bf16 {D}, {ar(b)}, {vr(QM+4*q)}, 0",
                f"v_mfma_f32_32x32x8bf16_1k {D}, {vr(KL+2*(t//2),2)}, {vr(QL+4*q+2*(t%2),2)}, {D}"]
    def pv(n, a):
        t, q, u = n // 8, n % 8, n % 2
        b = KVR + 12 * (t % 8) + 4 + 4 * a; O = ar(16 * q, 16)
        c = "0" if (t == 0 and a == 0) else O
        return f"v_mfma_f32_32x32x16_bf16 {O}, {ar(b)}, {vr(P+8*u+4*a)}, {c}"
    def owrite(q):
        return [(f"ds_write_b128 v{246+q//2}, {ar(16*q+4*k)} offset:{12288*(q%2)+1024*k}", None) for k in range(3)]
    g.wait(vm="kv0")
    stamp(g, 1, 9, 36, 254)
    P1Q['ls'].flush()
    for ins in qk(0): e(ins)
    import os
    if os.environ.get("DBG") == "k2a":
        dump(g, ["v15", "v48", "v49", "v50", "v51", "v80", "v81", "v16", "a128", "a132", "a136"] + [f"v{96+r}" for r in range(16)])
    g.log_nops = True
    for n in range(128):
        t, q, u = n // 8, n % 8, n % 2
        Sb = S + 16 * u; Pb = P + 8 * u
        if n % 32 == 0 and n: stamp(g, 1, 9 + n // 32, 36, 254)
        if n in (13, 84):
            g.log_nops = False
            (slotB_load if n == 13 else slotB_store)(g)
            g.log_nops = True
        seq = []
        for r in range(0, 16, 2):
            seq.append(f"v_exp_f32 v{Sb+r}, v{Sb+r}")
            if r == 0 and n > 0:
                seq.append(f"v_cvt_pk_bf16_f32 v{P+8*(1-u)+7}, v{S+16*(1-u)+14}, v{S+16*(1-u)+15}")
            seq.append(f"v_exp_f32 v{Sb+r+1}, v{Sb+r+1}")
            if r >= 2: seq.append(f"v_cvt_pk_bf16_f32 v{Pb+r//2-1}, v{Sb+r-2}, v{Sb+r-1}")
        m = (qk(n + 1) if n < 127 else [None, None]) + ([pv(n - 1, 0), pv(n - 1, 1)] if n > 0 else [None, None])
        extra = []
        if q == 1 and t >= 1 and t + 7 < 16: extra = kvload(t + 7)
        if t == 15 and q >= 2: extra = owrite(q - 2)
        if n in XQ: assert not extra; extra = XQ[n]
        after = {0: [], 1: [], 2: [], 3: []}
        order = [0, 2, 3, 3] if not (t == 15) else [2, 3, 3, 1]
        for k, x in enumerate(extra): after[order[k]].append(x)
        mpos = {3: 0, 9: 1, 15: 2, 21: 3}
        for i, ins in enumerate(seq):
            if i in mpos:
                k = mpos[i]
                if k == 0 and q == 7 and t < 15: g.wait(vm=f"kv{t+1}")
                if m[k]: e(m[k])
                for x, tag in after[k]:
                    if isinstance(tag, tuple): g.wait(lg=tag[1]); tag = tag[0]
                    e(x, tag=tag)
            e(ins)
    g.log_nops = False
    e(f"v_cvt_pk_bf16_f32 v{P+8+7}, v{S+16+14}, v{S+16+15}")
    e(pv(127, 0)); e(pv(127, 1))
    stamp(g, 1, 13, 36, 254)
    g.wait_all(vm=False)
    e("s_barrier")
    T = 16
    for ee in range(2):
        for src in range(3):
            for k in range(3):
                e(f"ds_read_b128 {vr(T+36*ee+12*src+4*k)}, v{249+src} offset:{12288*ee+1024*k}", tag=f"o{ee}")
    e(f"""
    s_lshr_b32 s17, s16, 1
    s_lshl_b32 s18, s14, 1
    s_add_u32 s17, s17, s18
    s_mul_i32 s17, s17, 36864
    s_add_u32 s17, s17, {WS_O}
    s_and_b32 s19, s16, 1
    s_lshl_b32 s18, s15, 12
    s_lshl_b32 s20, s19, 11
    s_add_u32 s18, s18, s20
    s_add_u32 s18, s18, s17
    s_lshl_b32 s20, s15, 9
    s_lshl_b32 s19, s19, 3
    s_add_u32 s20, s20, s19
    s_add_u32 s20, s20, s17
    s_add_u32 s20, s20, 32768""")
    for ee in range(2):
        A = 96 + 16 * ee
        for r in range(11): e(f"v_accvgpr_read_b32 v{A+r}, a{96+16*ee+r}")
        g.wait(lg=f"o{ee}")
        b = T + 36 * ee
        for r in [10] + list(range(10)):
            e(f"v_add_f32 v{b+r}, v{b+r}, v{b+12+r}")
            e(f"v_add_f32 v{A+r}, v{A+r}, v{b+24+r}")
            e(f"v_add_f32 v{A+r}, v{A+r}, v{b+r}")
            if r == 10: e(f"v_rcp_f32 v{A+10}, v{A+10}")
        for r in range(10): e(f"v_mul_f32 v{A+r}, v{A+r}, v{A+10}")
        for uu in range(4): e(f"v_cvt_pk_bf16_f32 v{128+4*ee+uu}, v{A+2*uu}, v{A+2*uu+1}")
        e(f"v_cvt_pk_bf16_f32 v{136+ee}, v{A+8}, v{A+9}")
        e(f"buffer_store_dwordx4 {vr(128+4*ee)}, v2, s[36:39], s18 offen offset:{1024*ee}")
    e("s_mov_b32 exec_hi, 0")
    e(f"buffer_store_dwordx2 v[136:137], v2, s[36:39], s20 offen")
    stamp(g, 1, 14, 36, 254)
    e("s_endpgm")
    p1_slow(g)
    g.label("k2_fallback")
    g.vmq = []; g.lgq = []
    M = 128
    e("s_waitcnt vmcnt(0)")
    e("s_mov_b32 exec_lo, 0")
    for q in range(8): e(f"v_mov_b32 v{QL+4*q}, 0")
    e("s_mov_b32 exec_lo, -1")
    for q in range(8): e(f"v_mov_b32 v{M+q}, 0xff7fffff")
    e(f"""
    v_mov_b32 v141, 0
    s_mul_i32 s72, s16, {16*2304}
    s_add_u32 s72, s72, {WS_KV}
    s_mov_b32 s73, 0""")
    g.label("k2_fb_loop")
    e("""
    s_lshr_b32 s74, s73, 2
    s_lshl_b32 s74, s74, 10
    s_and_b32 s75, s73, 3
    s_lshl_b32 s75, s75, 2
    s_add_u32 s74, s74, s75
    s_add_u32 s74, s74, s21
    buffer_load_dwordx4 v[136:139], v2, s[36:39], s72 offen sc1
    buffer_load_dword v140, v2, s[36:39], s74 offen sc1
    s_waitcnt vmcnt(0)""")
    for q in range(8):
        D = vr(S, 16)
        e(f"v_mfma_f32_32x32x16_bf16 {D}, v[136:139], {vr(QM+4*q)}, 0")
        e(f"v_mfma_f32_32x32x8bf16_1k {D}, v[140:141], {vr(QL+4*q,2)}, {D}")
        for r in range(0, 16, 2): e(f"v_max3_f32 v{M+q}, v{S+r}, v{S+r+1}, v{M+q}")
    e("""
    s_add_u32 s72, s72, 2304
    s_add_u32 s73, s73, 1
    s_cmp_lt_u32 s73, 16""")
    g.drain()
    e("s_cbranch_scc1 k2_fb_loop")
    for q in range(8):
        e(f"v_mov_b32 v136, v{M+q}")
        e(f"v_permlane32_swap_b32 v136, v{M+q}")
        e(f"v_max_f32 v{M+q}, v{M+q}, v136")
    e("v_lshlrev_b32 v137, 2, v1")
    for pp in range(4):
        e(f"""
        s_lshl_b32 s17, s{68+pp}, 11
        v_add_u32 v{S+pp}, s17, v137
        s_lshl_b32 s18, s16, 8
        v_add_u32 v138, s18, v{S+pp}
        ds_write_b32 v138, v{M+2*pp}
        ds_write_b32 v138, v{M+2*pp+1} offset:1024""")
    e("s_waitcnt lgkmcnt(0)")
    e("s_barrier")
    for q in range(8):
        for k in range(4):
            e(f"ds_read_b32 v{S+8+k}, v{S+q//2} offset:{1024*(q%2)+256*k}")
        e("s_waitcnt lgkmcnt(0)")
        e(f"v_max3_f32 v{S+8}, v{S+8}, v{S+9}, v{S+10}")
        e(f"v_max_f32 v{S+8}, v{S+8}, v{S+11}")
        e(f"v_cvt_pk_bf16_f32 v{S+9}, v{S+8}, v{S+8}")
        e(f"v_lshlrev_b32 v{S+9}, 16, v{S+9}")
        e(f"v_sub_f32 v{S+10}, v{S+8}, v{S+9}")
        e("s_mov_b32 exec_lo, 0")
        e(f"v_cvt_pk_bf16_f32 v{QL+4*q}, -v{S+9}, -v{S+10}")
        e("s_mov_b32 exec_lo, -1")
    e("s_barrier")
    g.drain()
    e("s_branch k2_main")
    kernel_tail(g, name)
    return name, 256, 163840
```

```python
from common import *
XI, WQA, WL, KVI, MISC = 0, 73728, 122880, 132096, 159744
ZA, STM, STP = MISC, MISC + 128, MISC + 256
QX = 24576
X, RING, ACC, ACL, CSM, CSL, XA, SEL, ONES = 16, 160, 192, 208, 212, 216, 220, 224, 228
QM, QL = 16, 48
NS = int(os.environ.get("P1NS", "3"))
NQ = int(os.environ.get("P1NQ", "6"))
FLK = int(os.environ.get("P1FLK", "8"))
CLR = 128
NE = int(os.environ.get("P1NE", "16"))
QB = [2, 4, 6]
OB = int(os.environ.get("P1OB", "2"))
CE, CT = [int(x) for x in os.environ.get("P1C", "22,32").split(",")]
PK = int(os.environ.get("P1PK", "30"))
Q = {}

def p1_issue(g):
    e = g.e
    e("s_load_dwordx16 s[64:79], s[0:1], 0")
    e("s_load_dwordx4 s[8:11], s[0:1], 72")
    map_imajor(g, 14, 15, 17)
    e(f"""
    v_lshrrev_b32 v2, 6, v0
    v_and_b32 v1, 63, v0
    s_mov_b32 s42, 0x3f803f80
    v_readfirstlane_b32 s16, v2
    v_lshrrev_b32 v3, 3, v1
    v_and_b32 v4, 7, v1
    v_lshrrev_b32 v5, 4, v1
    v_mul_u32_u24 v6, 1152, v3
    s_and_b32 s17, s16, 1
    s_lshl_b32 s17, s17, 2
    v_or_b32 v5, s17, v5
    v_xor_b32 v5, v5, v4
    v_lshl_add_u32 v5, v5, 4, v6
    v_mul_u32_u24 v7, 43, v1
    v_lshrrev_b32 v7, 7, v7
    v_mul_u32_u24 v8, 12, v7
    v_lshlrev_b32 v7, 4, v1
    v_sub_u32 v7, v7, v8
    s_lshl_b32 s17, s14, 3
    s_and_b32 s18, s15, 1
    s_lshl_b32 s18, s18, 2
    s_add_u32 s17, s17, s16
    s_add_u32 s17, s17, s18
    s_mul_i32 s98, s17, 9216
    s_xor_b32 s17, s17, 4
    s_mul_i32 s99, s17, 9216
    s_mul_i32 s100, s16, 9216
    s_mul_i32 s101, s16, 768
    s_mul_i32 s40, s16, 576
    s_mov_b32 s34, 2359296
    s_mov_b32 s35, 0x00020000
    s_cmp_lt_u32 s15, 4
    s_cselect_b32 s6, 20736, 0
    s_mov_b32 s7, 0x00020000
    s_cmp_lt_u32 s15, 2
    s_waitcnt lgkmcnt(0)
    s_mov_b32 s32, s64
    s_mov_b32 s33, s65
    s_cselect_b32 s4, s68, s70
    s_cselect_b32 s5, s69, s71""")
    srd(g, 36, 10, WS_SIZE)
    e(f"""
    s_lshl_b32 s17, s2, 2
    s_add_u32 s17, s17, s16
    s_cmp_eq_u32 s17, {4*CLR}
    s_cbranch_scc0 p1_noclr
    s_mov_b32 s10, 256
    s_mov_b32 s11, 0x00020000
    v_mov_b32 v10, 0
    v_mov_b32 v11, 0
    v_lshlrev_b32 v9, 6, v1
    s_mov_b32 s17, {WS_FL}
    buffer_store_dwordx2 v[10:11], v9, s[36:39], s17 offen sc1
    s_mov_b64 exec, 1
    v_mov_b32 v9, 1
    s_waitcnt vmcnt(0)
    buffer_store_dword v9, off, s[8:11], 0 sc1
    s_mov_b64 exec, -1""")
    g.label("p1_noclr")
    g.vmq = []
    for n in range(9):
        e(f"s_add_u32 m0, s100, {XI + 896*n}")
        e(f"s_add_u32 s17, s40, {2304*n}")
        e(f"buffer_load_dwordx4 v5, s[32:35], s98 offen offset:{128*n} lds", tag=f"s{n}")
        e(f"s_add_u32 m0, s101, {KVI + 3072*n}")
        e("s_mov_b32 exec_hi, 0xffff")
        e(f"buffer_load_dwordx4 v7, s[4:7], s17 offen lds", tag=f"s{n}")
        e("s_mov_b32 exec_hi, -1")
    for n in range(9):
        e(f"s_add_u32 m0, s100, {XI + 36864 + 896*n}")
        e(f"buffer_load_dwordx4 v5, s[32:35], s99 offen offset:{128*n} lds", tag="xo")
    srd(g, 56, 66, 663552)
    srd(g, 64, 8, 256)

def qtag(row):
    return f"q{min(row // (576 // NQ), NQ - 1)}"
def wq_main(g, u):
    base = WQA + 3072 * u if u < 16 else XI + 3072 * (u - 16)
    g.e(f"s_add_u32 m0, s41, {base}")
    g.e(f"s_add_u32 s17, s40, {27648*u}")
    g.e(f"buffer_load_dwordx4 v232, s[56:59], s17 offen lds", tag=qtag(24 * u))
def wq_left(g, u):
    g.e(f"s_add_u32 m0, s99, {WL + 768*u}")
    g.e(f"s_add_u32 s17, s98, {55296*u}")
    g.e(f"buffer_load_dword v13, s[56:59], s17 offen lds", tag=qtag(48 * u))
def wq_range(g, u0, u1):
    for u in range(u0, u1):
        wq_main(g, u)
        if u % 2 == 1: wq_left(g, u // 2)

def p1_compute(g):
    e = g.e
    ls = LS2(g, 36, 254, {1: 46, 2: 48, 3: 50, 4: 52, 5: 72, 6: 74, 7: 76, 8: 78})
    Q["ls"] = ls
    e(f"""
    v_lshrrev_b32 v8, 2, v1
    v_and_b32 v9, 4, v8
    v_and_b32 v4, 7, v1
    v_xor_b32 v9, v9, v4
    v_lshrrev_b32 v10, 1, v9
    v_and_b32 v9, 1, v9
    v_lshrrev_b32 v6, 3, v1
    v_mul_u32_u24 v6, 1152, v6
    v_mad_u32_u24 v6, v10, 36, v6
    v_lshl_add_u32 v232, v9, 4, v6
    v_and_b32 v9, 3, v1
    v_mul_u32_u24 v8, 1152, v8
    v_mad_u32_u24 v13, v9, 36, v8
    s_sub_u32 s17, s16, 1
    s_mul_i32 s18, s15, 144
    s_mul_i32 s40, s17, 9216
    s_add_u32 s40, s40, s18
    s_lshl_b32 s41, s17, 10
    s_mul_i32 s98, s17, 18432
    s_add_u32 s98, s98, s18
    s_add_u32 s98, s98, 32
    s_lshl_b32 s99, s17, 8""")
    e(f"""
    v_and_b32 v4, 31, v1
    v_lshrrev_b32 v5, 5, v1
    v_bfe_u32 v6, v1, 2, 2
    v_lshl_add_u32 v6, v5, 3, v6
    v_and_b32 v7, 3, v1
    v_bfe_u32 v8, v1, 4, 1
    v_lshrrev_b32 v9, 3, v4
    v_mul_u32_u24 v9, 9216, v9
    v_and_b32 v10, 7, v4
    v_lshl_add_u32 v9, v10, 7, v9
    v_bfe_u32 v10, v4, 1, 3
    v_xor_b32 v10, v10, v5""")
    for q in range(4):
        e(f"v_xor_b32 v11, {2*q}, v10")
        e(f"v_lshl_add_u32 v{XA+q}, v11, 4, v9")
    e(f"""
    s_lshr_b32 s17, s16, 1
    v_bfe_u32 v9, v1, 3, 1
    v_xor_b32 v9, s17, v9
    v_lshlrev_b32 v9, 6, v9
    v_lshl_add_u32 v9, v8, 5, v9
    v_lshl_add_u32 v9, v7, 3, v9
    v_lshl_add_u32 v14, v6, 7, v9
    v_add_u32 v233, {WQA}, v14
    s_lshl_b32 s17, s17, 3
    s_add_u32 s17, s17, {WL}
    v_lshl_add_u32 v9, v6, 4, s17
    v_and_b32 v10, 1, v7
    v_cmp_eq_u32 vcc, v10, v8
    v_mov_b32 v11, {ZA}
    v_mov_b32 v12, 256
    v_cndmask_b32 v234, v11, v9, vcc
    v_cndmask_b32 v235, 0, v12, vcc
    v_bfe_u32 v9, v1, 2, 1
    v_cmp_eq_u32 vcc, v9, v8
    v_mov_b32 v{ONES}, s42
    v_mov_b32 v{ONES+1}, s42
    v_mov_b32 v{ONES+2}, s42
    v_mov_b32 v{ONES+3}, s42""")
    for k in range(4): e(f"v_cndmask_b32 v{SEL+k}, 0, v{ONES}, vcc")
    MO = lambda a: a - 131072
    e(f"""
    v_lshrrev_b32 v9, 1, v7
    v_lshl_add_u32 v9, v10, 1, v9
    s_cmp_lt_u32 s15, 2
    s_cselect_b64 vcc, -1, 0
    v_cndmask_b32 v9, v9, v7, vcc
    v_cmp_eq_u32 vcc, 0, v8
    v_cndmask_b32 v9, 4, v9, vcc
    v_mul_u32_u24 v15, 48, v6
    v_lshl_add_u32 v15, v9, 3, v15
    v_add_u32 v15, {KVI}, v15
    v_mov_b32 v9, 0
    s_mov_b32 s17, 0x20000
    v_lshl_add_u32 v12, v4, 2, s17
    v_lshl_add_u32 v8, v4, 3, s17
    v_add_u32 v7, s17, v2
    ds_write_b32 v12, v9 offset:{MO(ZA)}
    s_lshr_b32 s17, s15, 1
    s_add_u32 s55, s17, 1
    s_cmp_lt_u32 s15, 4
    s_cselect_b32 s55, s55, 0
    s_cmp_eq_u32 s16, 0
    s_cselect_b32 s54, s55, 0
    s_lshl_b32 s22, s14, 1
    s_and_b32 s17, s15, 1
    s_add_u32 s22, s22, s17
    s_mul_i32 s23, s22, 2304
    s_add_u32 s23, s23, {WS_KV}
    s_mov_b32 s63, 0x40000""")
    stamp(g, 1, 0, 36, 254)
    SK = 36 // NS; HK = SK // 2
    PART = KVI + 768 * HK
    assert 768 * HK >= 4352
    def xread(s, reg=0, tag=None): e(f"ds_read_b128 {vr(X+4*s)}, v{XA+s%4} offset:{36864*reg+1024*(s//4)}", tag=tag or f"k{s}")
    def sbar(c):
        g.wait(vm=f"s{(c + 1) * SK // 4 - 1}"); e("s_barrier")
        if c == 0: ls(1)
        if c == NS - 1: e("buffer_load_dword v255, off, s[64:67], 0 sc1", tag="mark")
    def corr_b(nm, dst):
        e(f"""
        v_cvt_pk_bf16_f32 v{dst}, v{nm}, v{nm}
        v_cmp_gt_u32 vcc, 32, v1
        v_lshlrev_b32 v{dst}, 16, v{dst}
        v_sub_f32 v{dst}, v{nm}, v{dst}
        v_cvt_pk_bf16_f32 v{dst}, v{nm}, v{dst}
        v_cndmask_b32 v{dst}, 0, v{dst}, vcc
        v_mov_b32 v{dst+1}, v{dst}""")
    def corr_a(cs, dst):
        e(f"""
        v_cvt_pk_bf16_f32 v{dst}, v{cs}, v{cs}
        v_lshlrev_b32 v{dst+1}, 16, v{dst}
        v_sub_f32 v{dst+1}, v{cs}, v{dst+1}
        v_cvt_pk_bf16_f32 v{dst+1}, v{dst+1}, v{dst+1}""")
    def get_stats(slot, t):
        for k in range(2): e(f"ds_read_b64 {vr(t+2*k,2)}, v8 offset:{MO(STP)+512*slot+256*k}", tag="st")
    def fin_stats(t):
        g.wait(lg="st")
        e(f"""
        v_add_f32 v10, v{t}, v{t+2}
        v_add_f32 v11, v{t+1}, v{t+3}
        v_mul_f32 v10, {fhex(-1/576)}, v10
        v_mul_f32 v11, {fhex(1/576)}, v11
        v_fma_f32 v11, -v10, v10, v11
        v_add_f32 v11, {fhex(1e-5)}, v11
        v_rsq_f32 v11, v11""")
    def mx_store(lab):
        e(f"""
        s_lshl_b32 s17, s15, 2
        s_add_u32 s17, s17, s16
        s_lshr_b32 s17, s17, 1
        s_cmp_eq_u32 s17, 1
        s_cbranch_scc0 {lab}
        s_lshl_b32 s17, s14, 8
        s_and_b32 s18, s16, 1
        s_lshl_b32 s18, s18, 7
        s_add_u32 s17, s17, s18
        s_add_u32 s17, s17, {WS_MX - 131072}
        v_sub_f32 v9, 0, v10""")
        g.raw(f"    buffer_store_dword v9, v12, s[36:39], s17 offen")
        g.label(lab)
    def dots(s, first):
        for d in range(4):
            a = RING + 2 * (d % 2)
            e(f"v_dot2_f32_bf16 v{a}, v{X+4*s+d}, s42, {'0' if first and d < 2 else 'v%d' % a}")
            e(f"v_dot2_f32_bf16 v{a+1}, v{X+4*s+d}, v{X+4*s+d}, {'0' if first and d < 2 else 'v%d' % (a+1)}")
    def dots_end(slot, k):
        e(f"""
        v_add_f32 v{RING}, v{RING}, v{RING+2}
        v_add_f32 v{RING+1}, v{RING+1}, v{RING+3}
        v_mov_b32 v{RING+2}, v{RING}
        v_mov_b32 v{RING+3}, v{RING+1}
        v_permlane32_swap_b32 v{RING}, v{RING+2}
        v_permlane32_swap_b32 v{RING+1}, v{RING+3}
        v_add_f32 v{RING}, v{RING}, v{RING+2}
        v_add_f32 v{RING+1}, v{RING+1}, v{RING+3}
        ds_write_b64 v8, {vr(RING,2)} offset:{MO(STP)+512*slot+256*k}""")
    def sphase(half, kind):
        ks = [s for s in range(36) if (s % SK) // HK == half]
        LA = 3 if kind in "KV" else 4
        if kind in "KV": e("s_setprio 2")
        def issue(n):
            s = ks[n]
            if n % HK == 0: sbar(n // HK)
            if kind in "KV":
                b = RING + 4 * (n % 4)
                e(f"ds_read_b64_tr_b16 {vr(b,2)}, v15 offset:{768*s}", tag=f"k{s}")
                e(f"ds_read_b64_tr_b16 {vr(b+2,2)}, v15 offset:{768*s+192}", tag=f"k{s}")
            if kind != "N" or half == 0: xread(s)
        for n in range(LA): issue(n)
        for n, s in enumerate(ks):
            b = RING + 4 * (n % 4)
            if kind != "N": g.wait(lg=f"k{s}")
            if kind in "KV":
                A, B = (vr(X+4*s), vr(b)) if kind == "V" else (vr(b), vr(X+4*s))
                e(f"v_mfma_f32_32x32x16_bf16 {vr(ACC,16)}, {A}, {B}, {'0' if n == 0 else vr(ACC,16)}")
            if n + LA < 18: issue(n + LA)
            if kind in "KV":
                e(f"v_mfma_f32_16x16x32_bf16 {vr(CSM)}, {vr(SEL)}, {vr(b)}, {'0' if n == 0 else vr(CSM)}")
            if half == 0: xread(s + HK, tag="-")
            if kind == "S": dots(s, n == 0)
        if kind == "S": dots_end(0, half)
        if kind in "KV" and half == 1:
            e(f"ds_write_b32 v12, v{CSM} offset:{MO(PART)+4096}")
            for q in range(4 if kind == "V" else 3): e(f"ds_write_b128 v7, {vr(ACC+4*q)} offset:{MO(PART)+1024*q}")
            e("s_setprio 0")
    def sc(w0):
        g.wait(vm="xo" if w0 else f"q{QB[0]-1}"); g.wait_all(vm=False)
        e("s_barrier"); ls(2)
    def prod(kind):
        get_stats(0, RING + 4)
        e(f"ds_read_b32 v{RING+2}, v12 offset:{MO(PART)+4096}", tag="c")
        nq = 4 if kind == "V" else 3
        for q in range(nq): e(f"ds_read_b128 {vr(RING+8+4*q)}, v7 offset:{MO(PART)+1024*q}", tag="p")
        fin_stats(RING + 4)
        if kind == "V":
            e(f"ds_write_b32 v12, v11 offset:{MO(STM)}")
            e(f"v_lshlrev_b32 v9, 4, v5")
            e(f"v_add_u32 v9, 0x20000, v9")
        g.wait(lg="c")
        e(f"v_add_f32 v{CSM}, v{CSM}, v{RING+2}")
        corr_a(CSM, RING)
        corr_b(10, RING + 2)
        g.wait(lg="p")
        for r in range(16 if kind == "V" else 10): e(f"v_add_f32 v{ACC+r}, v{ACC+r}, v{RING+8+r}")
        if kind == "V":
            for q in range(4): e(f"ds_read_b128 {vr(RING+8+4*q)}, v9 offset:{MO(STM)+32*q}", tag="r")
        A, B = (vr(RING+2,2), vr(RING,2)) if kind == "V" else (vr(RING,2), vr(RING+2,2))
        e(f"v_mfma_f32_32x32x8bf16_1k {vr(ACC,16)}, {A}, {B}, {vr(ACC,16)}")
    e("""
    s_cmp_lg_u32 s16, 0
    s_cbranch_scc1 p1_r123
    s_cmp_eq_u32 s55, 1
    s_cbranch_scc1 p1_rk
    s_cmp_eq_u32 s55, 2
    s_cbranch_scc1 p1_rv""")
    lq0 = list(g.lgq); vq0 = list(g.vmq)
    sphase(0, "N"); sc(True)
    get_stats(0, RING); fin_stats(RING)
    e("s_branch p1_qe")
    g.label("p1_rk")
    g.vmq = list(vq0); g.lgq = list(lq0)
    sphase(0, "K"); sc(True); prod("K")
    e(f"""
    s_lshr_b32 s17, s22, 2
    s_lshl_b32 s17, s17, 10
    s_and_b32 s18, s22, 3
    s_lshl_b32 s18, s18, 2
    s_add_u32 s17, s17, s18
    s_add_u32 s17, s17, {WS_KL}
    s_lshl_b32 s22, s22, 6
    s_add_u32 s22, s22, {WS_FL}""")
    for r in range(10): e(f"v_mul_f32 v{ACC+r}, v{ACC+r}, v11")
    for u in range(5): e(f"v_cvt_pk_bf16_f32 v{RING+u}, v{ACC+2*u}, v{ACC+2*u+1}")
    e(f"buffer_store_dwordx4 {vr(RING)}, v2, s[36:39], s23 offen sc1")
    e(f"v_cndmask_b32 v{RING+4}, v{ONES}, v{RING+4}, vcc")
    e(f"buffer_store_dword v{RING+4}, v2, s[36:39], s17 offen sc1")
    e(f"v_mul_f32 v13, v{ACC}, v{ACC}")
    for r in range(1, 8): e(f"v_fmac_f32 v13, v{ACC+r}, v{ACC+r}")
    e(f"""
    v_mov_b32 v9, v13
    v_permlane32_swap_b32 v9, v13
    v_add_f32 v13, v13, v9
    v_fmac_f32 v13, v{ACC+8}, v{ACC+8}
    v_fmac_f32 v13, v{ACC+9}, v{ACC+9}
    v_mov_b32 v9, v13
    v_permlane16_swap_b32 v9, v13
    v_max_u32 v13, v13, v9""")
    for sh in (8, 4, 2, 1):
        e(f"v_max_u32_dpp v13, v13, v13 row_ror:{sh} row_mask:0xf bank_mask:0xf")
    e(f"""
    v_or_b32 v13, 1, v13
    s_setprio 0
    s_branch p1_qe""")
    g.label("p1_rv")
    g.vmq = list(vq0); g.lgq = list(lq0)
    sphase(0, "V"); sc(True); prod("V")
    e(f"""
    v_mul_u32_u24 v9, 320, v5
    v_lshl_add_u32 v9, v4, 4, v9
    v_cmp_lt_u32 vcc, 17, v4
    s_lshl_b32 s22, s22, 6
    s_add_u32 s22, s22, {WS_FL+4}
    v_mov_b32 v13, 1""")
    g.wait(lg="r")
    for r in range(16): e(f"v_mul_f32 v{ACC+r}, v{ACC+r}, v{RING+8+r}")
    for u in range(8): e(f"v_cvt_pk_bf16_f32 v{RING+u}, v{ACC+2*u}, v{ACC+2*u+1}")
    for u in range(8): e(f"v_cndmask_b32 v{RING+u}, v{RING+u}, v{ONES}, vcc")
    e("s_mov_b32 exec_lo, 0x000fffff")
    e("s_mov_b32 exec_hi, 0x000fffff")
    for a in range(2):
        e(f"buffer_store_dwordx4 {vr(RING+4*a)}, v9, s[36:39], s23 offen offset:{1024+640*a} sc1")
    e("s_mov_b64 exec, -1")
    e("s_setprio 0")
    e("s_branch p1_qe")
    g.label("p1_r123")
    g.vmq = list(vq0); g.lgq = list(lq0)
    wq_range(g, 0, NE)
    vq1 = list(g.vmq)
    e("""
    s_cmp_eq_u32 s16, 2
    s_cbranch_scc1 p1_r2
    s_cmp_eq_u32 s16, 3
    s_cbranch_scc1 p1_r3
    s_cmp_eq_u32 s55, 1
    s_cbranch_scc1 p1_r1k
    s_cmp_eq_u32 s55, 2
    s_cbranch_scc1 p1_r1v""")
    sphase(1, "N"); e("s_branch p1_o")
    for lab, kind in (("p1_r1k", "K"), ("p1_r1v", "V"), ("p1_r3", "S")):
        g.label(lab); g.vmq = list(vq1); g.lgq = list(lq0)
        sphase(1, kind)
        if kind != "S": e("s_branch p1_o")
    LA = 3; QK = 36 // NQ
    CS2, CSP = X, X + 8
    def flag(par):
        if par == 0:
            e("s_cmp_eq_u32 s16, 0")
            e("s_cbranch_scc0 p1_nw0")
            e("s_waitcnt vmcnt(0)")
            g.label("p1_nw0")
        g.wait(vm="mark")
        g.label(f"p1_mk{par}")
        e(f"""
        v_readfirstlane_b32 s17, v255
        s_cmp_lg_u32 s17, 0
        s_cbranch_scc0 p1_mkslow{par}""")
        g.label(f"p1_mkok{par}")
        if par == 0:
            e("s_cmp_eq_u32 s54, 0")
            e("s_cbranch_scc1 p1_nofl")
            e("s_mov_b64 exec, 1")
            e("s_waitcnt vmcnt(0)")
            g.raw("    buffer_store_dword v13, off, s[36:39], s22 sc1")
            e("s_mov_b64 exec, -1")
            g.label("p1_nofl")
        ls(8)
    def qbar(k):
        g.wait(vm=f"q{QB[k]-1}"); e("s_barrier")
    def qloop(par):
        def rd(s):
            b = RING + 8 * (s % 4)
            va, o = (233, 2048 * s) if s < 24 else (14, XI + 2048 * (s - 24))
            return [f"ds_read_b64_tr_b16 {vr(b,2)}, v{va} offset:{o}", f"ds_read_b64_tr_b16 {vr(b+2,2)}, v{va} offset:{o+512}",
                    f"ds_read_b64_tr_b16 {vr(b+4,2)}, v234", f"ds_read_b64_tr_b16 {vr(b+6,2)}, v234 offset:64", "v_add_u32 v234, v234, v235"]
        bars = {QK * QB[0]: 1, QK * QB[1]: 2} if par == 0 else {QK * QB[1] - OB: 2}
        own = range(0, CE) if par == 0 else range(CE, CT)
        ls(4)
        for s in range(LA):
            for t in rd(s): e(t, tag=f"k{s}")
        for s in range(36):
            b = RING + 8 * (s % 4); z = s == 0
            g.wait(lg=f"k{s}")
            e(f"v_mfma_f32_32x32x16_bf16 {vr(ACC,16)}, {vr(b)}, {vr(X+4*s)}, {'0' if z else vr(ACC,16)}")
            l = rd(s + LA) if s + LA < 36 else []
            if s + LA in bars: qbar(bars[s + LA])
            for t in l[:3]: e(t, tag=f"k{s+LA}")
            e(f"v_mfma_f32_16x16x32_bf16 {vr(ACL)}, {vr(b+4)}, {vr(X+4*s)}, {'0' if z else vr(ACL)}")
            for t in l[3:]: e(t, tag=f"k{s+LA}")
            if s in own or s >= CT:
                m, c = (CSM, CSL) if s < CT else (CS2, CS2 + 4)
                z = s in (own[0], CT)
                e(f"v_mfma_f32_16x16x32_bf16 {vr(m)}, {vr(SEL)}, {vr(b)}, {'0' if z else vr(m)}")
                e(f"v_mfma_f32_16x16x32_bf16 {vr(c)}, {vr(b+4)}, {vr(ONES)}, {'0' if z else vr(c)}")
            if s == FLK: flag(par)
            if s == 1 and par == 1: get_stats(1, 4)
            if s == 3:
                if par == 1: fin_stats(4)
                mx_store(f"p1_mx{par}")
            if s == 6: corr_b(10, 6)
            if s == 7:
                e(f"""
                s_xor_b32 s17, s16, s15
                s_and_b32 s17, s17, 1
                s_lshl_b32 s17, s17, 1
                s_lshr_b32 s18, s16, 1
                s_add_u32 s17, s17, s18
                s_lshl_b32 s18, s17, 11
                v_add_u32 v8, s18, v2
                s_lshl_b32 s18, s17, 9
                v_lshlrev_b32 v4, 2, v1
                v_add_u32 v9, s18, v4
                v_mul_f32 v11, {fhex(CQ)}, v11
                v_lshlrev_b32 v5, 6, v1
                s_mov_b32 s23, {WS_FL}
                s_lshl_b32 s18, s16, 11
                v_add_u32 v12, s18, v2""")
            if s == CT:
                e(f"ds_write_b128 v12, {vr(CSL)} offset:36864", tag="cw")
                e(f"ds_write_b32 v12, v{CSM} offset:{36864+1024}", tag="cw")
                e("v_xor_b32 v12, 2048, v12")
            if s == CT + 2:
                g.wait(lg="cw"); e("s_barrier")
                e(f"ds_read_b128 {vr(CSP)}, v12 offset:36864")
                e(f"ds_read_b32 v{CSP+4}, v12 offset:{36864+1024}")
            if s == PK: e(f"buffer_load_dwordx2 v[254:255], v5, s[36:39], s23 offen sc1")
    g.label("p1_o")
    sc(False)
    e("s_cmp_eq_u32 s16, 3")
    e("s_cbranch_scc1 p1_o3")
    vq = list(g.vmq)
    for half in range(2):
        if half: g.label("p1_o3"); g.lgq = []; g.vmq = list(vq)
        ks = list(range(18 * half, 18 * half + 18)); ko = list(range(18 - 18 * half, 36 - 18 * half))
        for s in ks[:8]: xread(s, 1)
        wq_range(g, NE, 24)
        rest = ks[8:] + ko
        for n, s in enumerate(ks):
            g.wait(lg=f"k{s}")
            dots(s, n == 0)
            for _ in range(2):
                if rest: xread(rest.pop(0), 1)
        assert not rest
        dots_end(1, half)
        if not half: e("s_branch p1_ob")
    g.label("p1_ob")
    g.wait_all(vm=False)
    qbar(1)
    ls(3)
    qloop(1)
    e("s_branch p1_qx")
    g.label("p1_r2")
    g.vmq = list(vq1); g.lgq = list(lq0)
    sphase(0, "S"); sc(False)
    get_stats(0, RING)
    wq_range(g, NE, 24)
    fin_stats(RING)
    g.label("p1_qe")
    g.wait_all(vm=False)
    ls(3)
    qloop(0)
    g.label("p1_qx")
    ls(5)
    g.label("p1_poll")
    e(f"""
    s_waitcnt vmcnt(0)
    v_min_u32 v13, v254, v255
    v_mov_b32 v15, v254
    v_cmp_eq_u32 vcc, 0, v13
    s_cbranch_vccnz p1_pslow""")
    g.label("p1_ok")
    g.vmq = []
    ls(7)
    Q["kvloads"]()
    g.wait_all(vm=False)
    e(f"v_add3_f32 v{CSM}, v{CSM}, v{CS2}, v{CSP+4}".replace("v_add3_f32", "v_add_f32").replace(f", v{CSP+4}", ""))
    e(f"v_add_f32 v{CSM}, v{CSM}, v{CSP+4}")
    corr_a(CSM, RING)
    e(f"v_mfma_f32_32x32x8bf16_1k {vr(ACC,16)}, {vr(RING,2)}, v[6:7], {vr(ACC,16)}")
    for r in range(4): e(f"v_add_f32 v{CSL+r}, v{CSL+r}, v{CS2+4+r}")
    for r in range(4): e(f"v_add_f32 v{CSL+r}, v{CSL+r}, v{CSP+r}")
    for r in range(4): e(f"v_fmac_f32 v{ACL+r}, v{CSL+r}, v10")
    for r in range(4): e(f"v_mul_f32 v{ACL+r}, v{ACL+r}, v11")
    e(f"v_cmp_gt_u32 vcc, 32, v1")
    for r in range(16): e(f"v_mul_f32 v{ACC+r}, v{ACC+r}, v11")
    for u in range(8): e(f"v_cvt_pk_bf16_f32 v{RING+u}, v{ACC+2*u}, v{ACC+2*u+1}")
    for h in range(2): e(f"ds_write_b128 v8, {vr(RING+4*h)} offset:{QX+1024*h}")
    for h in range(2): e(f"v_mul_f32 v{RING+8+h}, v{ACC+8*h}, v{ACC+8*h}")
    for r in range(1, 8):
        for h in range(2): e(f"v_fmac_f32 v{RING+8+h}, v{ACC+8*h+r}, v{ACC+8*h+r}")
    for h in range(2): e(f"v_mov_b32 v{RING+10+h}, v{RING+8+h}")
    for h in range(2): e(f"v_permlane32_swap_b32 v{RING+10+h}, v{RING+8+h}")
    for h in range(2): e(f"v_add_f32 v{RING+8+h}, v{RING+8+h}, v{RING+10+h}")
    for h in range(2):
        for r in range(2): e(f"v_fmac_f32 v{RING+8+h}, v{ACL+2*h+r}, v{ACL+2*h+r}")
    for h in range(2): e(f"v_cvt_pk_bf16_f32 v{RING+10+h}, v{ACL+2*h}, v{ACL+2*h+1}")
    for h in range(2): e(f"v_cndmask_b32 v{RING+8+h}, v{RING+8+h}, v{RING+10+h}, vcc")
    for h in range(2): e(f"ds_write_b32 v9, v{RING+8+h} offset:{QX+8192+256*h}")
    for pp in range(4):
        e(f"""
        s_lshl_b32 s17, s{68+pp}, 11
        v_add_u32 v{RING+12+pp}, s17, v2
        s_lshl_b32 s17, s{68+pp}, 9
        v_add_u32 v{RING+16+pp}, s17, v4""")
    g.wait_all(vm=False)
    e("s_barrier")
    ls(6)
    for q in range(8): e(f"ds_read_b32 v{QL+4*q}, v{RING+16+q//2} offset:{QX+8192+256*(q%2)}")
    for q in range(8): e(f"ds_read_b128 {vr(QM+4*q)}, v{RING+12+q//2} offset:{QX+1024*(q%2)}")

def p1_slow(g):
    e = g.e
    g.label("p1_pslow")
    e(f"""
    s_cmp_eq_u32 s63, 0
    s_cbranch_scc1 p1_ok
    s_sub_u32 s63, s63, 1
    buffer_load_dwordx2 v[254:255], v5, s[36:39], s23 offen sc1
    s_branch p1_poll""")
    for par in range(2):
        g.label(f"p1_mkslow{par}")
        e(f"""
        s_cmp_eq_u32 s63, 0
        s_cbranch_scc1 p1_mkok{par}
        s_sub_u32 s63, s63, 1
        buffer_load_dword v255, off, s[64:67], 0 sc1
        s_waitcnt vmcnt(0)
        s_branch p1_mk{par}""")
```

```python
import sys
from common import *
from ka import k2
from k3 import k3
from k4 import k4
def build(out, ks=(k2, k3, k4)):
    g = Gen()
    info = []
    for k in ks: info.append(k(g))
    hdr = "".join(f"; @launch kernel={n} grid=({gr},1,1) block=(256,1,1) lds={l}\n" for n, gr, l in info)
    txt = hdr + '.amdgcn_target "amdgcn-amd-amdhsa--gfx950"\n.text\n' + g.text() + '.section .rodata,"a"\n'
    for n, gr, l in info:
        txt += kdesc(n, 64, 64) if n == "k5_kernel" else kdesc(n)
    open(out, "w").write(txt)
    print("wrote", out, len(txt), "bytes; nops", g.nops)
if __name__ == "__main__":
    build(sys.argv[1] if len(sys.argv) > 1 else f"cdna_kernels/{NAME}.s")
```

```python
from asmgen import *
import math, struct
NAME = "sequential_preLN__grouped_kv_mqa__dense_activation_silu__prompt"
WS_Q = 0x0
WS_KV = 0x300000
WS_KL = 0x330000
WS_FL = 0x338000
WS_WB = 0x339000
WS_W = 0x400000
WS_O = 0x1100000
WS_HC = 0x1340000
WS_SS = 0x1580000
WS_P = 0x1600000
NPO = 23
WS_SIZE = 268435456
QREC = 1536
def f2u(x): return struct.unpack("<I", struct.pack("<f", x))[0]
def fhex(x): return "0x%08x" % f2u(x)
CQ = (18 ** -0.5) * math.log2(math.e)

def srd(g, s, lo, size):
    g.e(f"""
    s_mov_b32 s{s}, s{lo}
    s_mov_b32 s{s+1}, s{lo+1}
    s_mov_b32 s{s+2}, {size}
    s_mov_b32 s{s+3}, 0x00020000""")

def kernel_head(g, name, nwg):
    g.raw(f".globl {name}\n.p2align 8\n.type {name},@function\n{name}:")
    g.st = {}; g.vmq = []; g.lgq = []
    g.e(f"s_cmp_ge_u32 s2, {nwg}")
    g.e(f"s_cbranch_scc1 {name}_end")

def kernel_tail(g, name):
    g.label(f"{name}_end")
    g.e("s_endpgm")

def kdesc(name, nv=512, acc=256):
    return f""".p2align 6
.amdhsa_kernel {name}
  .amdhsa_next_free_vgpr {nv}
  .amdhsa_next_free_sgpr 102
  .amdhsa_accum_offset {acc}
  .amdhsa_group_segment_fixed_size 0
  .amdhsa_kernarg_size 88
  .amdhsa_user_sgpr_count 2
  .amdhsa_user_sgpr_kernarg_segment_ptr 1
  .amdhsa_system_sgpr_workgroup_id_x 1
.end_amdhsa_kernel
"""

import os
LJ = int(os.environ.get("LJ", "2"))
def map_ij(g):
    m = (8 >> LJ) - 1
    g.e(f"""
    s_and_b32 s15, s2, {m}
    s_lshl_b32 s15, s15, {LJ}
    s_lshr_b32 s14, s2, 3
    s_and_b32 s17, s14, {(1 << LJ) - 1}
    s_or_b32 s15, s15, s17
    s_lshr_b32 s14, s14, {LJ}
    s_and_b32 s17, s14, {m}
    s_lshr_b32 s14, s14, {3 - LJ}
    s_lshl_b32 s14, s14, 3
    s_or_b32 s14, s14, s17
    s_and_b32 s17, s2, {7 & ~m}
    s_or_b32 s14, s14, s17""")
def ij_of(b):
    m = (8 >> LJ) - 1
    x = b & 7; y = b >> 3
    j = ((x & m) << LJ) | (y & ((1 << LJ) - 1)); y >>= LJ
    i = ((y >> (3 - LJ)) << 3) | (y & m) | (x & 7 & ~m)
    return i, j
WOM, WOL, WBI, MISC = 73728, 147456, 156672, 162560
def chk(regs, tmp):
    l = [f"v_max3_u32 v{tmp}, v{regs[0]}, v{regs[1]}, v{regs[2]}"]
    r = regs[3:]
    while len(r) >= 2: l.append(f"v_max3_u32 v{tmp}, v{tmp}, v{r[0]}, v{r[1]}"); r = r[2:]
    if r: l.append(f"v_max_u32 v{tmp}, v{tmp}, v{r[0]}")
    return l
class Gather:
    def __init__(self, g, nm, groups, tmp, cnt):
        self.g, self.nm, self.groups, self.tmp, self.cnt = g, nm, groups, tmp, cnt
    def issue(self, p):
        for t in self.groups[p][1]: self.g.e(t, tag=f"{self.nm}{p}")
    def check(self, p):
        g = self.g
        g.wait(vm=f"{self.nm}{p}")
        for t in chk(self.groups[p][0], self.tmp): g.e(t)
        g.e(f"v_cmp_eq_u32 vcc, -1, v{self.tmp}")
        g.e(f"s_cbranch_vccnz {self.nm}_slow{p}")
        g.label(f"{self.nm}_back{p}")
    def slow(self):
        g = self.g; e = g.e; n = len(self.groups)
        for p in range(n):
            g.label(f"{self.nm}_slow{p}")
            e(f"s_cmp_eq_u32 s{self.cnt}, 0")
            e(f"s_cbranch_scc1 {self.nm}_back{p}")
            e(f"s_sub_u32 s{self.cnt}, s{self.cnt}, 1")
            for t in self.groups[p][1]: e(t)
            if p + 1 < n: e(f"s_waitcnt vmcnt({len(self.groups[p][1])})")
            for q in range(p + 1, n):
                for t in chk(self.groups[q][0], self.tmp): e(t)
                e(f"v_cmp_eq_u32 vcc, -1, v{self.tmp}")
                e(f"s_cbranch_vccz {self.nm}_s{p}k{q}")
                for t in self.groups[q][1]: e(t)
                g.label(f"{self.nm}_s{p}k{q}")
            e("s_waitcnt vmcnt(0)")
            for t in chk(self.groups[p][0], self.tmp): e(t)
            e(f"v_cmp_eq_u32 vcc, -1, v{self.tmp}")
            g.drain()
            e(f"s_cbranch_vccnz {self.nm}_slow{p}")
            e(f"s_branch {self.nm}_back{p}")

WS_DBG = 0x8000000
def dump(g, regs, srdb=36, tmp=255, end=True):
    e = g.e
    e("s_waitcnt vmcnt(0) lgkmcnt(0)")
    e("s_nop 15")
    e(f"v_and_b32 v{tmp}, 63, v0")
    e(f"v_lshrrev_b32 v{tmp-1}, 6, v0")
    e(f"v_lshl_add_u32 v{tmp-1}, s2, 2, v{tmp-1}")
    e(f"v_mul_u32_u24 v{tmp-1}, {256*len(regs)}, v{tmp-1}")
    e(f"v_lshl_add_u32 v{tmp}, v{tmp}, 2, v{tmp-1}")
    e(f"v_add_u32 v{tmp}, {WS_DBG}, v{tmp}")
    for k, r in enumerate(regs):
        e(f"buffer_store_dword {r}, v{tmp}, s[{srdb}:{srdb+3}], 0 offen")
        e(f"v_add_u32 v{tmp}, 256, v{tmp}")
    if end: e("s_endpgm")

import os
PROF = os.environ.get("PROF")
def stamp(g, kid, idx, srdb, vt, wreg=16):
    if not PROF: return
    e = g.e
    e("s_memtime s[0:1]")
    e("s_memrealtime s[12:13]")
    if idx == 0:
        e("s_lshl_b32 s3, s2, 2")
        e(f"s_add_u32 s3, s3, s{wreg}")
        e("s_lshl_b32 s3, s3, 7")
        e(f"s_add_u32 s3, s3, {WS_DBG + kid*0x100000}")
    e("s_waitcnt lgkmcnt(0)"); g.lgq = []
    e(f"v_mov_b32 v{vt}, s0")
    e(f"v_mov_b32 v{vt+1}, s12")
    g.raw(f"    buffer_store_dwordx2 v[{vt}:{vt+1}], off, s[{srdb}:{srdb+3}], s3 offset:{8*idx}")

class LStamp:
    def __init__(self, g, kid, srdb, vt, sbase):
        self.g, self.kid, self.srdb, self.vt, self.sb, self.l = g, kid, srdb, vt, sbase, []
    def __call__(self, idx):
        if not PROF: return
        s = self.sb + 2 * len(self.l); self.l.append(idx)
        self.g.raw(f"    s_memrealtime s[{s}:{s+1}]")
    def flush(self):
        if not PROF: return
        e = self.g.e
        e("s_waitcnt lgkmcnt(0)")
        for k, idx in enumerate(self.l):
            e(f"v_mov_b32 v{self.vt}, 0")
            e(f"v_mov_b32 v{self.vt+1}, s{self.sb+2*k}")
            self.g.raw(f"    buffer_store_dwordx2 v[{self.vt}:{self.vt+1}], off, s[{self.srdb}:{self.srdb+3}], s3 offset:{8*idx}")
            e("s_nop 1")

class LS2:
    def __init__(self, g, srdb, vt, m):
        self.g, self.srdb, self.vt, self.m = g, srdb, vt, m
    def __call__(self, idx):
        if not PROF: return
        s = self.m[idx]
        self.g.raw(f"    s_memrealtime s[{s}:{s+1}]")
    def flush(self):
        if not PROF: return
        e = self.g.e
        e("s_waitcnt lgkmcnt(0)")
        for idx, s in self.m.items():
            e(f"v_mov_b32 v{self.vt}, 0")
            e(f"v_mov_b32 v{self.vt+1}, s{s}")
            self.g.raw(f"    buffer_store_dwordx2 v[{self.vt}:{self.vt+1}], off, s[{self.srdb}:{self.srdb+3}], s3 offset:{8*idx}")
            e("s_nop 1")
```

```python
from common import *
from p1 import p1_issue, p1_compute, p1_slow, Q as P1Q
from kb import phase_b, stash_setup, STASH
from kc import kc_jobs, kc_wload, NR
QM, QL, KL, S, P = 16, 48, 80, 96, 128
KVR = 128
BMAX2 = 40.0 * 40.0
RNT = os.environ.get("K2NT", "")
RSC = os.environ.get("K2SC", " sc1")

STG = 36864
STB = 1024
RT = 144
DA, DB = 80, 89

def w_unit(g, su, srdb, va, sso, D):
    e = g.e
    e(f"""
    s_cmp_ge_u32 s{su}, 576
    s_cselect_b32 s49, 1, 0
    s_cselect_b32 s{srdb}, s78, s76
    s_cselect_b32 s{srdb+1}, s79, s77
    s_mov_b32 s{srdb+2}, 5308416
    s_mov_b32 s{srdb+3}, 0x00020000
    s_mov_b32 s50, 9216
    s_cmov_b32 s50, 1152
    s_mov_b32 s52, 1152
    s_cmov_b32 s52, {576*1152}
    s_cselect_b32 s46, 576, 0
    s_sub_u32 s46, s{su}, s46
    s_mul_i32 s47, s46, 911
    s_lshr_b32 s47, s47, 16
    s_mul_i32 s48, s47, 72
    s_sub_u32 s48, s46, s48
    s_and_b32 s46, s48, 1
    s_lshr_b32 s48, s48, 1
    s_mul_i32 s51, s48, s50
    s_lshl_b32 s51, s51, 4
    s_mul_i32 s52, s52, s47
    s_add_u32 s51, s51, s52
    s_mul_i32 s52, s46, 576
    s_add_u32 s{sso}, s51, s52
    v_mul_lo_u32 v7, v4, s50
    v_lshl_add_u32 v{va}, v5, 4, v7""")
    e(f"""
    s_lshr_b32 s51, s48, 3
    s_add_u32 s51, s51, s48
    s_mul_i32 s52, s48, 9
    s_sub_u32 s52, s52, {9*32-8}
    s_cmp_ge_u32 s48, 32
    s_cselect_b32 s51, s52, s51
    s_cmp_eq_u32 s49, 1
    s_cselect_b32 s48, s51, s48
    s_mul_i32 s46, s46, 9
    v_add_u32 v7, s46, v1
    v_and_b32 v8, 1, v7
    v_lshrrev_b32 v9, 1, v7
    v_subrev_u32 v9, s47, v9
    v_and_b32 v9, 7, v9
    v_cmp_gt_u32 vcc, 16, v7
    v_cmp_eq_u32 s[52:53], 0, v9
    v_lshrrev_b32 v10, 2, v7
    v_and_b32 v11, 3, v7
    v_cndmask_b32 v9, 0, v9, vcc
    s_and_b64 s[52:53], s[52:53], vcc
    s_not_b64 vcc, vcc
    s_cmp_eq_u32 s49, 1
    s_cselect_b64 s[52:53], s[52:53], vcc
    s_cselect_b64 vcc, -1, 0
    v_and_b32 v12, 1, v9
    v_lshl_add_u32 v12, v12, 1, v8
    v_lshrrev_b32 v13, 1, v9
    v_cndmask_b32 v10, v10, v12, vcc
    v_cndmask_b32 v11, v11, v13, vcc
    v_mul_u32_u24 v12, 9, v10
    v_sub_u32 v12, s48, v12
    v_add_u32 v13, 36, v12
    v_min_u32 v12, v12, v13
    v_mad_u32_u24 v12, v11, 36, v12
    v_mul_u32_u24 v13, 324, v10
    v_add3_u32 v12, v12, v13, 18
    s_mul_i32 s51, s48, 57
    s_lshr_b32 s51, s51, 9
    s_mul_i32 s51, s51, 315
    s_add_u32 s51, s51, s48
    v_mad_u32_u24 v13, v8, 9, s51
    s_mul_i32 s51, s47, {4*324}
    s_mul_i32 s50, s49, 162
    s_add_u32 s51, s51, s50
    s_add_u32 s51, s51, {WS_W//1024}
    v_cndmask_b32 v12, v12, v13, s[52:53]
    v_add_lshl_u32 v12, v12, s51, 10""")
    for n in range(9): e(f"v_readlane_b32 s{D+n}, v12, {n}")

def repack_setup(g):
    e = g.e
    e(f"""
    v_lshrrev_b32 v4, 2, v1
    v_and_b32 v5, 3, v1
    s_lshl_b32 s54, s2, 2
    s_add_u32 s54, s54, s16
    s_mul_i32 s61, s16, 9216
    s_add_u32 s61, s61, {STG}""")
    w_unit(g, 54, 24, 252, 44, DA)
    e(f"""
    v_and_b32 v7, 1, v1
    v_bfe_u32 v8, v1, 1, 1
    v_lshlrev_b32 v7, 4, v7
    v_lshl_add_u32 v7, v8, 3, v7
    v_bfe_u32 v8, v1, 4, 1
    v_lshl_add_u32 v7, v8, 5, v7
    v_bfe_u32 v8, v1, 2, 2
    v_lshl_add_u32 v7, v8, 6, v7
    v_lshrrev_b32 v8, 5, v1
    v_lshl_add_u32 v7, v8, 9, v7
    v_add_u32 v244, s61, v7
    v_add_u32 v245, {STB}, v7
    s_mov_b32 s60, 0
    s_mov_b64 s[28:29], s[24:25]
    s_mov_b32 s30, s26
    s_mov_b32 s31, 0x00020000
    s_mov_b32 s45, s44
    v_mov_b32 v253, v252
    v_mov_b32 v241, 0
    s_and_b32 s54, s2, 3
    s_cmp_eq_u32 s54, s16
    s_cbranch_scc0 k2_rs_done
    s_cmp_lt_u32 s2, 128
    s_cbranch_scc0 k2_rs_o
    s_mov_b32 s60, 1
    s_add_u32 s54, s2, 1024""")
    w_unit(g, 54, 28, 253, 45, DB)
    e("s_branch k2_rs_done")
    g.label("k2_rs_o")
    e(f"""
    s_cmp_lt_u32 s2, 200
    s_cbranch_scc0 k2_rs_done
    s_mov_b32 s60, 2
    s_sub_u32 s46, s2, 128
    s_lshr_b32 s48, s46, 1
    s_and_b32 s46, s46, 1
    s_mul_i32 s45, s48, {18*1152}
    s_mul_i32 s50, s48, {144*1152}
    s_sub_u32 s50, s50, {(144*32-16)*1152}
    s_cmp_ge_u32 s48, 32
    s_cselect_b32 s45, s50, s45
    s_mov_b32 s50, 2304
    s_cmov_b32 s50, {18*1152}
    s_mul_i32 s51, s46, 576
    s_add_u32 s45, s45, s51
    v_lshrrev_b32 v7, 1, v4
    v_mul_lo_u32 v7, v7, s50
    v_and_b32 v8, 1, v4
    v_mul_u32_u24 v8, 1152, v8
    v_add_u32 v7, v7, v8
    v_lshl_add_u32 v253, v5, 4, v7
    s_lshl_b32 s50, s48, 7
    s_lshl_b32 s51, s46, 2
    s_add_u32 s50, s50, s51
    s_add_u32 s{DB}, s50, {WS_WB}
    v_and_b32 v7, 3, v4
    v_lshlrev_b32 v7, 3, v7
    v_bfe_u32 v8, v4, 2, 1
    v_lshl_add_u32 v7, v8, 6, v7
    v_lshrrev_b32 v8, 3, v4
    v_lshl_add_u32 v241, v8, 5, v7""")
    g.label("k2_rs_done")

def dmaA(n):
    return [(f"s_add_u32 m0, s61, {960*n}", None),
            (f"buffer_load_dwordx4 v252, s[24:27], s44 offen offset:{64*n}{RNT} lds", "ra")]
def slotB_load(g):
    e = g.e
    q = list(g.vmq)
    B = STB
    e("s_cmp_eq_u32 s60, 1")
    e("s_cbranch_scc0 k2_bl_o")
    for n in range(9):
        e(f"s_mov_b32 m0, {B + 960*n}")
        e(f"buffer_load_dwordx4 v253, s[28:31], s45 offen offset:{64*n}{RNT} lds")
    e("s_branch k2_bl_done")
    g.label("k2_bl_o")
    e("s_cmp_eq_u32 s60, 2")
    e("s_cbranch_scc0 k2_bl_done")
    for n in range(9):
        e(f"buffer_load_dwordx4 {vr(RT+36+4*n)}, v253, s[4:7], s45 offen offset:{64*n}")
    g.label("k2_bl_done")
    g.vmq = q
def trread(va, n, R):
    return [(f"ds_read_b64_tr_b16 {vr(R,2)}, v{va} offset:{1024*n}", f"tr{n}"),
            (f"ds_read_b64_tr_b16 {vr(R+2,2)}, v{va} offset:{1024*n+256}", f"tr{n}")]
def slotB_store(g):
    e = g.e
    q = list(g.vmq); lq = list(g.lgq)
    e("s_cmp_eq_u32 s60, 0")
    e("s_cbranch_scc1 k2_bs_done")
    e("s_cmp_eq_u32 s60, 1")
    e("s_cbranch_scc0 k2_bs_o")
    for n in range(9):
        for t, _ in trread(245, n, RT + 36 + 4 * n): e(t)
    for n in range(9):
        e(f"s_waitcnt lgkmcnt({min(15, 16-2*n)})")
        e(f"buffer_store_dwordx4 {vr(RT+36+4*n)}, v2, s[36:39], s{DB+n} offen{RSC}")
    e("s_branch k2_bs_done")
    g.label("k2_bs_o")
    for d in range(36): e(f"v_dot2_f32_bf16 v{240+2*(d%2)}, v{RT+36+d}, s42, {'v%d' % (240+2*(d%2)) if d > 1 else 0}")
    e("v_add_f32 v240, v240, v242")
    for ctl in ("quad_perm:[1,0,3,2]", "quad_perm:[2,3,0,1]"):
        e(f"v_add_f32_dpp v240, v240, v240 {ctl} row_mask:0xf bank_mask:0xf")
    e(f"""
    v_mul_f32 v240, {fhex(1/576)}, v240
    v_cvt_pk_bf16_f32 v242, v240, v240
    v_lshlrev_b32 v242, 16, v242
    v_sub_f32 v242, v240, v242
    v_cvt_pk_bf16_f32 v240, v240, v242
    s_mov_b32 exec_lo, 0x11111111
    s_mov_b32 exec_hi, 0x11111111
    buffer_store_dword v240, v241, s[36:39], s{DB} offen sc1
    s_mov_b64 exec, -1""")
    g.label("k2_bs_done")
    g.vmq = q; g.lgq = lq

def k2(g):
    name = "kf_kernel"
    kernel_head(g, name, 256)
    e = g.e
    p1_issue(g)
    e("""
    v_lshlrev_b32 v2, 4, v1
    v_and_b32 v6, 31, v1
    v_mov_b32 v7, 18
    v_cmp_eq_u32 vcc, 22, v6
    v_lshrrev_b32 v8, 5, v1
    v_mul_u32_u24 v8, 320, v8
    v_cndmask_b32 v6, v6, v7, vcc
    v_mov_b32 v7, 0x7ffffff0
    v_cmp_gt_u32 vcc, 19, v6
    v_lshl_add_u32 v3, v6, 4, v8
    v_cndmask_b32 v3, v7, v3, vcc""")
    for pp in range(4):
        e(f"""
        s_add_u32 s18, s16, {pp+1}
        s_and_b32 s{68+pp}, s18, 3""")
    e(f"""
    s_mul_i32 s43, s16, {16*2304}
    s_add_u32 s43, s43, {WS_KV}
    s_lshl_b32 s21, s16, 12
    s_add_u32 s21, s21, {WS_KL}""")
    def kvload(t):
        l = []
        b = KVR + 12 * (t % 8); o = 2304 * (t % 2)
        l.append((f"buffer_load_dwordx4 {ar(b)}, v2, s[36:39], s43 offen offset:{o} sc1", f"kv{t}"))
        l.append((f"buffer_load_dwordx4 {ar(b+4)}, v3, s[36:39], s43 offen offset:{o+1024} sc1", f"kv{t}"))
        l.append((f"buffer_load_dwordx4 {ar(b+8)}, v3, s[36:39], s43 offen offset:{o+1664} sc1", f"kv{t}"))
        if t % 2 == 1: l.append((f"s_add_u32 s43, s43, 4608", None))
        return l
    repack_setup(g)
    stash_setup(g)
    e(f"""
    s_lshl_b32 s62, s2, 2
    s_add_u32 s62, s62, s16
    s_mul_i32 s20, s62, 5120
    s_add_u32 s20, s20, {WS_O}
    s_mul_i32 s62, s62, 18432
    s_add_u32 s62, s62, {WS_P}
    v_mov_b32 v236, -1
    v_mov_b32 v237, -1
    v_mov_b32 v238, -1
    v_mov_b32 v239, -1""")
    U = dict(zip("PA PS SB FL FR FC P0 PD".split(), [int(x) for x in os.environ.get("KAU", "34,3,32,76,88,94,5,6").split(",")]))
    XQ = {}
    def place(l, n0, step=1):
        n = n0
        while n in XQ or n % 8 == 1 and n < 72: n += 1
        assert n < 122, "filler overflow"
        XQ[n] = l
        return n + step
    for k in range(9): place(dmaA(k), 2 + 2 * k)
    n = U["PA"]
    for k in range(10):
        l = []
        if k: l.append((f"buffer_store_dwordx4 {vr(RT+4*k-4)}, v2, s[36:39], s{DA+k-1} offen{RSC}", ("st", f"tr{k-1}")))
        if k < 9: l += trread(244, k, RT + 4 * k)
        n = place(l, n, U["PS"])
    assert n < U["FL"] - 8
    for k in range(5):
        place([(f"buffer_store_dwordx4 v[236:239], v{13 if k == 4 else 2}, s[36:39], s20 offen offset:{1024*(k%4)} sc1", "st")], U["P0"] + U["PD"] // 2 + U["PD"] * k)
    for k in range(18):
        l = [(f"buffer_store_dwordx4 v[236:239], v2, s[36:39], s62 offen offset:{1024*(k%4)} sc1", "pp")]
        if k % 4 == 3: l.append(("s_add_u32 s62, s62, 4096", None))
        place(l, U["P0"] + U["PD"] * k)
    n = 20
    n = place([(f"v_accvgpr_read_b32 v{232+k}, a{STASH+k}", None) for k in range(4)], n)
    for u in range(21):
        if u < 16: va, go, lo, gb, lb = 232, (18 * (u // 2) + 8 * (u % 2)) * 1152, WOM + 1024 * u, 40, 41
        elif u < 18: va, go, lo, gb, lb = 233, (72 * (u - 16) + 16) * 1152, WOM + 65536 + 1024 * (u - 16), 40, 46
        elif u < 20: va, go, lo, gb, lb = 234, 72 * (u - 18) * 1152 + 128, WOL + 1024 * (u - 18), 40, 46
        else: va, go, lo, gb, lb = 235, 16 * 1152 + 128, WOL + 8192, 47, None
        n = place([(f"s_add_u32 s17, s{gb}, {go}", None), (f"s_add_u32 m0, s{lb}, {lo}" if lb else f"s_mov_b32 m0, {lo}", None),
                   (f"buffer_load_dwordx4 v{va}, s[4:7], s17 offen lds", "wo")], n)
    place([("v_lshlrev_b32 v240, 6, v1", None), (f"s_mov_b32 s17, {WS_FL+16}", None),
           ("buffer_load_dwordx4 v[240:243], v240, s[36:39], s17 offen sc1", "fl")], U["FR"])
    n = U["FC"] + 1
    n = place([("v_and_b32 v250, 0x1f0, v2", None), ("s_lshl_b32 s18, s16, 10", None), (f"s_add_u32 s17, s18, {WS_WB}", None),
               ("buffer_load_dwordx4 v[228:231], v2, s[36:39], s17 offen sc1", "wb")], n)
    n = place([(f"s_mov_b32 s17, {WS_WB+4096}", None), ("buffer_load_dwordx4 v[232:235], v250, s[36:39], s17 offen sc1", "wb"),
               (f"v_accvgpr_read_b32 v240, a{STASH+7}", None), (f"s_add_u32 s18, s18, {WBI}", None)], n)
    n = place([("buffer_load_dwordx4 v[216:219], v240, s[32:35], s49 offen", "xr"), ("buffer_load_dwordx4 v[220:223], v240, s[32:35], s49 offen offset:32", "xr"),
               ("buffer_load_dwordx4 v[224:227], v240, s[32:35], s48 offen offset:128", "xr"), ("v_add_u32 v251, s18, v2", None)], n)
    for k in range(0, NR, 2): n = place([(kc_wload(k), f"w{k}"), (kc_wload(k + 1), f"w{k+1}")], n, 2)
    n = place([(f"v_add_u32 v250, {WBI+4096}, v250", ("", None, "wb")), ("ds_write_b128 v251, v[228:231]", None), ("ds_write_b128 v250, v[232:235]", None)], n)
    print(sorted(XQ))
    for pp in range(3):
        e(f"""
        s_mul_i32 s17, s{68+pp}, 18432
        s_add_u32 s17, s17, {6144*pp}
        v_add_u32 v{246+pp}, s17, v2""")
    e("""
    s_mul_i32 s17, s16, 18432
    v_add_u32 v249, s17, v2""")
    def kvloads():
        e(f"buffer_load_dwordx4 {vr(KL)}, v2, s[36:39], s21 offen sc1", tag="kv0")
        for t in range(8):
            for ins, tag in kvload(t): e(ins, tag=tag)
            if t in (1, 2, 3):
                e(f"buffer_load_dwordx4 {vr(KL+4*t)}, v2, s[36:39], s21 offen offset:{1024*t} sc1", tag=f"kv{t+1}")
    P1Q['kvloads'] = kvloads
    p1_compute(g)
    e("""
    v_mov_b32 v14, v15
    v_permlane32_swap_b32 v14, v15
    v_max_u32 v15, v14, v15
    v_mov_b32 v14, v15
    v_permlane16_swap_b32 v14, v15
    v_max_u32 v15, v14, v15""")
    for sh in (8, 4, 2, 1):
        e(f"v_max_u32_dpp v15, v15, v15 row_ror:{sh} row_mask:0xf bank_mask:0xf")
    g.wait_all(vm=False)
    e("s_mov_b32 exec_lo, 0")
    for q in range(8):
        e(f"v_mul_f32 v{QL+4*q}, v{QL+4*q}, v15")
    e(f"v_max3_f32 v14, v{QL}, v{QL+4}, v{QL+8}")
    e(f"v_max3_f32 v14, v14, v{QL+12}, v{QL+16}")
    e(f"v_max3_f32 v14, v14, v{QL+20}, v{QL+24}")
    e(f"v_max_f32 v14, v14, v{QL+28}")
    e(f"v_cmp_nge_f32 vcc, {fhex(BMAX2)}, v14")
    for q in range(8): e(f"v_sqrt_f32 v{QL+4*q}, v{QL+4*q}")
    for q in range(8): e(f"v_cvt_pk_bf16_f32 v{QL+4*q}, -v{QL+4*q}, 0")
    e("s_mov_b32 exec_lo, -1")
    for q in range(8):
        e(f"v_mov_b32 v{QL+4*q+1}, 0")
        e(f"v_mov_b32 v{QL+4*q+2}, 0")
    e("s_cbranch_vccnz k2_fallback")
    g.label("k2_main")
    P1Q['ls'].flush()
    e(f"""
    s_mul_i32 s47, s15, 144
    s_mul_i32 s40, s16, {144*1152}
    s_add_u32 s40, s40, s47
    s_lshl_b32 s41, s16, 14
    s_lshl_b32 s46, s16, 11
    s_lshr_b32 s17, s16, 1
    s_lshl_b32 s18, s14, 1
    s_add_u32 s101, s17, s18
    s_mul_i32 s101, s101, 36864
    s_add_u32 s48, s101, s47
    s_and_b32 s18, s16, 1
    s_lshl_b32 s18, s18, 6
    s_add_u32 s49, s48, s18
    s_lshl_b32 s18, s15, 2
    s_add_u32 s18, s18, s16
    s_mul_i32 s18, s18, {324*1024}
    s_add_u32 s98, s18, {WS_W}
    s_add_u32 s99, s98, 8192
    s_add_u32 s100, s98, 16384
    v_add_u32 v13, 4096, v2""")
    for q in range(8): e(f"v_mov_b32 v{QL+4*q+3}, v{QL+4*q}")

    def qk(n):
        t, q, u = n // 8, n % 8, n % 2
        b = KVR + 12 * (t % 8); D = vr(S + 16 * u, 16)
        return [f"v_mfma_f32_32x32x16_bf16 {D}, {ar(b)}, {vr(QM+4*q)}, 0",
                f"v_mfma_f32_32x32x8bf16_1k {D}, {vr(KL+2*(t//2),2)}, {vr(QL+4*q+2*(t%2),2)}, {D}"]
    def pv(n, a):
        t, q, u = n // 8, n % 8, n % 2
        b = KVR + 12 * (t % 8) + 4 + 4 * a; O = ar(16 * q, 16)
        c = "0" if (t == 0 and a == 0) else O
        return f"v_mfma_f32_32x32x16_bf16 {O}, {ar(b)}, {vr(P+8*u+4*a)}, {c}"
    def owrite(q):
        return [(f"ds_write_b128 v{246+q//2}, {ar(16*q+4*k)} offset:{3072*(q%2)+1024*k}", None) for k in range(3)]
    g.wait(vm="kv0")
    stamp(g, 1, 9, 36, 254)
    for ins in qk(0): e(ins)
    g.log_nops = True
    for n in range(128):
        t, q, u = n // 8, n % 8, n % 2
        Sb = S + 16 * u; Pb = P + 8 * u
        if n % 32 == 0 and n: stamp(g, 1, 9 + n // 32, 36, 254)
        g.log_nops = False
        if n == 13: slotB_load(g)
        if n == U["SB"]: g.wait(vm="ra"); slotB_store(g)
        if n == U["FL"]:
            g.wait(vm="st")
            e(f"""
            s_barrier
            s_cmp_lg_u32 s16, 0
            s_cbranch_scc1 k2_nofl
            s_and_b32 s17, s2, 63
            s_lshl_b32 s17, s17, 6
            s_lshr_b32 s18, s2, 6
            s_lshl_b32 s18, s18, 2
            s_add_u32 s17, s17, s18
            s_add_u32 s20, s17, {WS_FL}
            s_mov_b64 exec, 1""")
            g.raw("    buffer_store_dword v236, off, s[36:39], s20 offset:16 sc1")
            e("s_mov_b64 exec, -1")
            g.label("k2_nofl")
        if n == U["FC"]:
            g.wait(vm="fl")
            g.label("k2_flchk")
            e("""
            v_min3_u32 v240, v240, v241, v242
            v_min_u32 v240, v240, v243
            v_cmp_eq_u32 vcc, 0, v240
            s_cbranch_vccnz k2_flslow""")
            g.label("k2_flok")
        g.log_nops = True
        seq = []
        for r in range(0, 16, 2):
            seq.append(f"v_exp_f32 v{Sb+r}, v{Sb+r}")
            if r == 0 and n > 0:
                seq.append(f"v_cvt_pk_bf16_f32 v{P+8*(1-u)+7}, v{S+16*(1-u)+14}, v{S+16*(1-u)+15}")
            seq.append(f"v_exp_f32 v{Sb+r+1}, v{Sb+r+1}")
            if r >= 2: seq.append(f"v_cvt_pk_bf16_f32 v{Pb+r//2-1}, v{Sb+r-2}, v{Sb+r-1}")
        m = (qk(n + 1) if n < 127 else [None, None]) + ([pv(n - 1, 0), pv(n - 1, 1)] if n > 0 else [None, None])
        extra = []
        if q == 1 and t >= 1 and t + 7 < 16: extra = kvload(t + 7)
        if t == 15 and q >= 2: extra = owrite(q - 2)
        if n in XQ: assert not extra; extra = XQ[n]
        after = {0: [], 1: [], 2: [], 3: []}
        order = [0, 2, 3, 3] if not (t == 15) else [2, 3, 3, 1]
        for k, x in enumerate(extra): after[order[k]].append(x)
        mpos = {3: 0, 9: 1, 15: 2, 21: 3}
        for i, ins in enumerate(seq):
            if i in mpos:
                k = mpos[i]
                if k == 0 and q == 7 and t < 15: g.wait(vm=f"kv{t+1}")
                if m[k]: e(m[k])
                for x, tag in after[k]:
                    if isinstance(tag, tuple): g.wait(lg=tag[1], vm=tag[2] if len(tag) > 2 else None); tag = tag[0]
                    e(x, tag=tag)
            e(ins)
    g.log_nops = False
    e(f"v_cvt_pk_bf16_f32 v{P+8+7}, v{S+16+14}, v{S+16+15}")
    e(pv(127, 0)); e(pv(127, 1))
    stamp(g, 1, 13, 36, 254)
    phase_b(g)
    g.label("k2_flslow")
    e(f"""
    s_cmp_eq_u32 s63, 0
    s_cbranch_scc1 k2_flok
    s_sub_u32 s63, s63, 1
    v_lshlrev_b32 v240, 6, v1
    s_mov_b32 s17, {WS_FL+16}
    buffer_load_dwordx4 v[240:243], v240, s[36:39], s17 offen sc1
    s_waitcnt vmcnt(0)
    s_branch k2_flchk""")
    p1_slow(g)
    g.label("k2_fallback")
    g.vmq = []; g.lgq = []
    M = 128
    e("s_waitcnt vmcnt(0)")
    e("s_mov_b32 exec_lo, 0")
    for q in range(8): e(f"v_mov_b32 v{QL+4*q}, 0")
    e("s_mov_b32 exec_lo, -1")
    for q in range(8): e(f"v_mov_b32 v{M+q}, 0xff7fffff")
    e(f"""
    v_mov_b32 v141, 0
    s_mul_i32 s72, s16, {16*2304}
    s_add_u32 s72, s72, {WS_KV}
    s_mov_b32 s73, 0""")
    g.label("k2_fb_loop")
    e("""
    s_lshr_b32 s74, s73, 2
    s_lshl_b32 s74, s74, 10
    s_and_b32 s75, s73, 3
    s_lshl_b32 s75, s75, 2
    s_add_u32 s74, s74, s75
    s_add_u32 s74, s74, s21
    buffer_load_dwordx4 v[136:139], v2, s[36:39], s72 offen sc1
    buffer_load_dword v140, v2, s[36:39], s74 offen sc1
    s_waitcnt vmcnt(0)""")
    for q in range(8):
        D = vr(S, 16)
        e(f"v_mfma_f32_32x32x16_bf16 {D}, v[136:139], {vr(QM+4*q)}, 0")
        e(f"v_mfma_f32_32x32x8bf16_1k {D}, v[140:141], {vr(QL+4*q,2)}, {D}")
        for r in range(0, 16, 2): e(f"v_max3_f32 v{M+q}, v{S+r}, v{S+r+1}, v{M+q}")
    e("""
    s_add_u32 s72, s72, 2304
    s_add_u32 s73, s73, 1
    s_cmp_lt_u32 s73, 16""")
    g.drain()
    e("s_cbranch_scc1 k2_fb_loop")
    for q in range(8):
        e(f"v_mov_b32 v136, v{M+q}")
        e(f"v_permlane32_swap_b32 v136, v{M+q}")
        e(f"v_max_f32 v{M+q}, v{M+q}, v136")
    e("v_lshlrev_b32 v137, 2, v1")
    for pp in range(4):
        e(f"""
        s_lshl_b32 s17, s{68+pp}, 11
        v_add_u32 v{S+pp}, s17, v137
        s_lshl_b32 s18, s16, 8
        v_add_u32 v138, s18, v{S+pp}
        ds_write_b32 v138, v{M+2*pp}
        ds_write_b32 v138, v{M+2*pp+1} offset:1024""")
    e("s_waitcnt lgkmcnt(0)")
    e("s_barrier")
    for q in range(8):
        for k in range(4):
            e(f"ds_read_b32 v{S+8+k}, v{S+q//2} offset:{1024*(q%2)+256*k}")
        e("s_waitcnt lgkmcnt(0)")
        e(f"v_max3_f32 v{S+8}, v{S+8}, v{S+9}, v{S+10}")
        e(f"v_max_f32 v{S+8}, v{S+8}, v{S+11}")
        e(f"v_cvt_pk_bf16_f32 v{S+9}, v{S+8}, v{S+8}")
        e(f"v_lshlrev_b32 v{S+9}, 16, v{S+9}")
        e(f"v_sub_f32 v{S+10}, v{S+8}, v{S+9}")
        e("s_mov_b32 exec_lo, 0")
        e(f"v_cvt_pk_bf16_f32 v{QL+4*q}, -v{S+9}, -v{S+10}")
        e("s_mov_b32 exec_lo, -1")
    e("s_barrier")
    g.drain()
    e("s_branch k2_main")
    kernel_tail(g, name)
    return name, 256, 163840
```

```python
from common import *
from kc import kc_setup, kc_body
STASH = 248
STM, STP = MISC + 128, MISC + 256
MEAN = MISC

def stash_setup(g):
    e = g.e
    e(f"""
    v_lshrrev_b32 v8, 2, v1
    v_and_b32 v9, 4, v8
    v_and_b32 v4, 7, v1
    v_xor_b32 v9, v9, v4
    v_lshlrev_b32 v9, 4, v9
    v_lshrrev_b32 v6, 3, v1
    v_mul_u32_u24 v7, 1152, v6
    v_add_u32 v7, v7, v9
    v_accvgpr_write_b32 a{STASH}, v7
    v_lshrrev_b32 v10, 4, v1
    v_mul_u32_u24 v10, {18*1152}, v10
    v_and_b32 v6, 1, v6
    v_mul_u32_u24 v6, 1152, v6
    v_add3_u32 v7, v10, v6, v9
    v_accvgpr_write_b32 a{STASH+1}, v7
    v_and_b32 v6, 15, v1
    v_mul_u32_u24 v6, 1152, v6
    v_add_u32 v7, v10, v6
    v_accvgpr_write_b32 a{STASH+2}, v7
    v_lshrrev_b32 v6, 1, v1
    v_mul_u32_u24 v6, 18, v6
    v_and_b32 v7, 1, v1
    v_add_u32 v6, v6, v7
    v_mul_u32_u24 v6, 1152, v6
    v_accvgpr_write_b32 a{STASH+3}, v6""")
    e(f"""
    s_and_b32 s17, s16, 1
    v_lshrrev_b32 v5, 5, v1
    v_bfe_u32 v6, v1, 2, 2
    v_bfe_u32 v8, v1, 1, 1
    v_bfe_u32 v9, v1, 4, 1
    v_lshl_add_u32 v10, v5, 3, v6
    v_bfe_u32 v11, v1, 3, 1
    v_xor_b32 v11, s17, v11
    v_lshlrev_b32 v11, 6, v11
    v_lshl_add_u32 v11, v9, 5, v11
    v_lshl_add_u32 v11, v7, 4, v11
    v_lshl_add_u32 v11, v8, 3, v11
    v_lshl_add_u32 v11, v10, 7, v11
    s_lshl_b32 s18, s17, 15
    s_add_u32 s18, s18, {WOM}
    v_add_u32 v11, s18, v11
    v_accvgpr_write_b32 a{STASH+4}, v11
    v_lshlrev_b32 v10, 4, v10
    v_lshl_add_u32 v10, v8, 3, v10
    s_lshl_b32 s18, s17, 12
    s_add_u32 s18, s18, {WOL}
    v_add_u32 v10, s18, v10
    v_lshlrev_b32 v11, 3, v6
    v_lshl_add_u32 v11, v5, 5, v11
    s_lshl_b32 s18, s17, 11
    s_add_u32 s18, s18, {WBI}
    v_add_u32 v11, s18, v11
    v_cmp_eq_u32 vcc, 0, v9
    v_mov_b32 v12, 256
    v_cndmask_b32 v10, v11, v10, vcc
    v_lshrrev_b32 v12, v9, v12
    v_accvgpr_write_b32 a{STASH+5}, v10
    v_accvgpr_write_b32 a{STASH+6}, v12
    v_and_b32 v6, 31, v1
    v_mul_u32_u24 v6, 1152, v6
    v_lshl_add_u32 v6, v5, 4, v6
    v_accvgpr_write_b32 a{STASH+7}, v6""")

DUAL = int(os.environ.get("DUAL", "0"))
OD, NG1 = [int(x) for x in os.environ.get("KBO", "0,3").split(",")]
def phase_b(g):
    e = g.e
    def st(t):
        e(t + " sc1")
        if DUAL: e(t)
    OF, AO, AX, A2 = 16, 96, 112, 128
    TO, TX, TS, TY, T2, TD = 232, 233, 234, 235, 236, 237
    wreg = lambda n: 128 + 12 * n if n < 10 else 12 * (n - 10)
    TR = []
    for n in range(18):
        b = wreg(n); o = 2048 * (n % 16)
        for k, va in enumerate((TX, TO) if n < 16 else (TY, TS)):
            TR.append((f"ds_read_b64_tr_b16 {ar(b+4*k,2)}, v{va} offset:{o}", f"b{n}"))
            TR.append((f"ds_read_b64_tr_b16 {ar(b+4*k+2,2)}, v{va} offset:{o+512}", f"b{n}"))
        TR.append((f"ds_read_b64_tr_b16 {ar(b+8,2)}, v{T2}", f"b{n}"))
        TR.append((f"ds_read_b64_tr_b16 {ar(b+10,2)}, v{T2} offset:64", f"b{n}"))
        if n == 15: TR.append((f"v_mad_u32_u24 v{T2}, v{TD}, s97, v{T2}", None))
        elif n < 17: TR.append((f"v_add_u32 v{T2}, v{T2}, v{TD}", None))
    def trs(k):
        while k > 0 and TR:
            t, tag = TR.pop(0); e(t, tag=tag)
            if tag: k -= 1
    e(f"""
    v_accvgpr_read_b32 v{TO}, a{STASH+4}
    v_accvgpr_read_b32 v{T2}, a{STASH+5}
    v_accvgpr_read_b32 v{TD}, a{STASH+6}
    s_and_b32 s86, s16, 1
    s_mul_i32 s17, s86, 28672
    s_sub_u32 s17, 65536, s17
    s_mul_i32 s97, s86, 14
    s_sub_u32 s97, 17, s97
    v_xor_b32 v{TX}, 64, v{TO}
    v_add_u32 v{TS}, s17, v{TO}
    v_add_u32 v{TY}, s17, v{TX}""")
    g.wait(vm="wo"); g.wait(vm="pp")
    g.wait_all(vm=False)
    e("s_barrier")
    T = 16
    for ee in range(2):
        for src in range(3):
            for k in range(3):
                e(f"ds_read_b128 {vr(T+36*ee+12*src+4*k)}, v249 offset:{6144*src+3072*ee+1024*k}", tag=f"o{ee}")
    e("""
    s_cmp_lg_u32 s16, 0
    s_cbranch_scc1 kb_nofl
    s_mov_b64 exec, 1""")
    g.raw("    buffer_store_dword v239, off, s[36:39], s20 offset:32 sc1")
    e("s_mov_b64 exec, -1")
    g.label("kb_nofl")
    e(f"""
    s_add_u32 s17, s101, {WS_O}
    s_lshl_b32 s18, s15, 12
    s_lshl_b32 s20, s86, 11
    s_add_u32 s18, s18, s20
    s_add_u32 s18, s18, s17
    s_add_u32 s89, s17, s20
    s_add_u32 s89, s89, 32768
    s_lshl_b32 s87, s86, 14
    s_add_u32 s87, s87, s17
    s_add_u32 s88, s87, 8192
    s_lshl_b32 s20, s15, 9
    s_lshl_b32 s21, s86, 3
    s_add_u32 s20, s20, s21
    s_add_u32 s20, s20, s17
    s_add_u32 s20, s20, 32768
    s_mov_b32 s83, 0x40000""")
    for ee in range(2):
        A = 96 + 16 * ee
        for r in range(11): e(f"v_accvgpr_read_b32 v{A+r}, a{96+16*ee+r}")
        g.wait(lg=f"o{ee}")
        b = T + 36 * ee
        for r in [10] + list(range(10)):
            e(f"v_add_f32 v{b+r}, v{b+r}, v{b+12+r}")
            e(f"v_add_f32 v{A+r}, v{A+r}, v{b+24+r}")
            e(f"v_add_f32 v{A+r}, v{A+r}, v{b+r}")
            if r == 10: e(f"v_rcp_f32 v{A+10}, v{A+10}")
            if ee == 1: trs(1)
        for r in range(10): e(f"v_mul_f32 v{A+r}, v{A+r}, v{A+10}")
        for uu in range(4): e(f"v_cvt_pk_bf16_f32 v{128+4*ee+uu}, v{A+2*uu}, v{A+2*uu+1}")
        e(f"v_cvt_pk_bf16_f32 v{136+ee}, v{A+8}, v{A+9}")
        for uu in range(4): e(f"v_min_u32 v{128+4*ee+uu}, -2, v{128+4*ee+uu}")
        st(f"buffer_store_dwordx4 {vr(128+4*ee)}, v2, s[36:39], s18 offen offset:{1024*ee}")
        e(f"v_min_u32 v{136+ee}, -2, v{136+ee}")
    e("s_mov_b32 exec_hi, 0")
    st(f"buffer_store_dwordx2 v[136:137], v2, s[36:39], s20 offen")
    e("s_mov_b32 exec_hi, -1")
    stamp(g, 1, 14, 36, 88)
    groups = []
    for p in range(5):
        ns = range(4 * p, min(4 * p + 4, 18))
        groups.append(([OF + 4 * n + k for n in ns for k in range(4)],
                       [f"buffer_load_dwordx4 {vr(OF+4*n)}, v{13 if p % 2 else 2}, s[36:39], s{87+p//2} offen offset:{1024*(n%4)} sc1" for n in ns]))
    GO = Gather(g, "og", groups, 238, 83)
    e("s_barrier")
    trs(OD)
    for p in range(NG1): GO.issue(p)
    stamp(g, 3, 0, 36, 88)
    e(f"""
    s_lshr_b32 s17, s16, 1
    s_xor_b32 s17, s17, s15
    s_and_b32 s17, s17, 1
    s_lshl_b32 s17, s17, 9
    s_add_u32 s17, s17, {STP}
    v_and_b32 v239, 31, v1
    v_lshl_add_u32 v240, v239, 3, s17
    ds_read_b32 v241, v240
    ds_read_b32 v242, v240 offset:256""", tag="xs")
    trs(12)
    g.wait(vm="xr")
    for d in range(8):
        e(f"v_lshlrev_b32 v{AO+2*d}, 16, v{216+d}")
        e(f"v_and_b32 v{AO+2*d+1}, 0xffff0000, v{216+d}")
        trs(2)
    e("s_sub_u32 s17, s86, 1")
    e("s_and_b32 s18, s17, 0xffff0000")
    for d in range(4):
        e(f"v_lshlrev_b32 v{A2+2*d}, 16, v{224+d}")
        e(f"v_and_b32 v{A2+2*d+1}, s18, v{224+d}")
        e(f"v_and_b32 v{A2+2*d}, s17, v{A2+2*d}")
        trs(2)
    g.wait(lg="xs")
    e(f"v_add_f32 v{A2+8}, v241, v242")
    e(f"v_mul_f32 v{A2+8}, {fhex(0.5/576)}, v{A2+8}")
    for r in range(9, 16): e(f"v_mov_b32 v{A2+r}, 0")
    e(f"""
    s_mul_i32 s17, s15, 4608
    s_add_u32 s17, s17, s101
    s_add_u32 s95, s17, {WS_HC+4096}
    s_lshl_b32 s18, s86, 11
    s_add_u32 s94, s17, s18
    s_add_u32 s94, s94, {WS_HC}
    s_lshl_b32 s17, s14, 12
    s_lshl_b32 s18, s16, 10
    s_add_u32 s17, s17, s18
    s_lshl_b32 s18, s15, 2
    s_add_u32 s17, s17, s18
    s_add_u32 s96, s17, {WS_SS}
    s_xor_b32 s17, s16, 1
    s_mul_i32 s17, s17, 18432
    v_add_u32 v240, s17, v2
    s_lshr_b32 s17, s16, 1
    s_lshl_b32 s17, s17, 7
    s_add_u32 s17, s17, {MEAN}
    v_lshl_add_u32 v243, v239, 2, s17""")
    e("v_lshlrev_b32 v9, 5, v1")
    trs(1000)
    for p in range(NG1, 5): GO.issue(p)
    for p in range(5):
        GO.check(p)
        if p == 0: stamp(g, 3, 1, 36, 88)
        for n in range(4 * p, min(4 * p + 4, 18)):
            b = wreg(n); o = vr(OF + 4 * n)
            g.wait(lg=f"b{n}")
            e(f"v_mfma_f32_32x32x16_bf16 {vr(AX,16)}, {ar(b)}, {o}, {'0' if n == 0 else vr(AX,16)}")
            e(f"v_mfma_f32_32x32x16_bf16 {vr(A2,16)}, {ar(b+8)}, {o}, {vr(A2,16)}")
            e(f"v_mfma_f32_32x32x16_bf16 {vr(AO,16)}, {ar(b+4)}, {o}, {vr(AO,16)}")
    stamp(g, 3, 2, 36, 88)
    if PROF: e("v_mov_b32 v88, s83"); g.raw("    buffer_store_dword v88, off, s[36:39], s3 offset:120")
    for k in range(4): e(f"ds_write_b128 v240, {vr(AX+4*k)} offset:{1024*k}")
    for k in range(3): e(f"ds_write_b128 v240, {vr(A2+4*k)} offset:{4096+1024*k}")
    e(f"v_add_f32 v{A2+8}, v{A2+8}, v{A2+9}")
    e(f"v_add_f32 v{A2+10}, v{A2+10}, v{A2+11}")
    g.wait_all(vm=False)
    e("s_barrier")
    R = 48
    e(f"ds_read_b128 {vr(R+24)}, v249 offset:{4096+2048}", tag="m")
    for k in range(4): e(f"ds_read_b128 {vr(R+4*k)}, v249 offset:{1024*k}", tag=f"r{k//2}")
    for k in range(2): e(f"ds_read_b128 {vr(R+16+4*k)}, v249 offset:{4096+1024*k}", tag="r2")
    e(f"v_add_f32 v{A2+8}, v{A2+8}, v{A2+10}")
    g.wait(lg="m")
    e(f"""
    v_add_f32 v{R+24}, v{R+24}, v{R+25}
    v_add_f32 v{R+26}, v{R+26}, v{R+27}
    v_add_f32 v{A2+8}, v{A2+8}, v{R+24}
    v_add_f32 v{A2+8}, v{A2+8}, v{R+26}""")
    M = A2 + 8; PK = 76
    for r in range(16): e(f"v_sub_f32 v{AO+r}, v{AO+r}, v{M}")
    for a in range(2):
        g.wait(lg=f"r{a}")
        for r in range(8 * a, 8 * a + 8): e(f"v_add_f32 v{AO+r}, v{AO+r}, v{R+r}")
        for u in range(4 * a, 4 * a + 4): e(f"v_cvt_pk_bf16_f32 v{PK+u}, v{AO+2*u}, v{AO+2*u+1}")
        for u in range(4 * a, 4 * a + 4): e(f"v_min_u32 v{PK+u}, -2, v{PK+u}")
        st(f"buffer_store_dwordx4 {vr(PK+4*a)}, v2, s[36:39], s94 offen offset:{1024*a}")
    e(f"v_mov_b32 v{A2+9}, 0")
    e("s_cmp_eq_u32 s86, 0")
    e("s_cbranch_scc0 kb_no8")
    vq = list(g.vmq)
    e("s_mov_b32 exec_hi, 0")
    g.wait(lg="r2")
    for r in range(8): e(f"v_add_f32 v{A2+r}, v{A2+r}, v{R+16+r}")
    for r in range(8): e(f"v_sub_f32 v{A2+r}, v{A2+r}, v{M}")
    for u in range(4): e(f"v_cvt_pk_bf16_f32 v{PK+8+u}, v{A2+2*u}, v{A2+2*u+1}")
    for u in range(4): e(f"v_min_u32 v{PK+8+u}, -2, v{PK+8+u}")
    st(f"buffer_store_dwordx4 {vr(PK+8)}, v2, s[36:39], s95 offen")
    e(f"ds_write_b32 v243, v{M}")
    for r in range(8): e(f"v_fmac_f32 v{A2+9}, v{A2+r}, v{A2+r}")
    e("s_mov_b32 exec_hi, -1")
    g.vmq = vq
    g.label("kb_no8")
    def ss():
        S = A2 + 9
        e(f"v_mul_f32 v{S+1}, v{AO}, v{AO}")
        for r in range(1, 16): e(f"v_fmac_f32 v{S + r % 2}, v{AO+r}, v{AO+r}")
        e(f"""
        v_add_f32 v{S}, v{S}, v{S+1}
        v_mov_b32 v{S+1}, v{S}
        v_permlane32_swap_b32 v{S}, v{S+1}
        v_add_f32 v{S}, v{S}, v{S+1}
        v_min_u32 v{S}, -2, v{S}
        s_mov_b32 exec_hi, 0
        buffer_store_dword v{S}, v9, s[36:39], s96 offen sc1
        s_mov_b32 exec_hi, -1""")
        g.wait_all(vm=False)
        stamp(g, 3, 3, 36, 88)
    kc_body(g, ss)
    GO.slow()
```

```python
from common import *
from collections import deque
XI, SC = 0, 73728
XV, ACC, F, T, RING, NR = 16, 48, 112, 128, 144, 18
SUM, PT, GT = 224, 240, 216
BASE = [136, 216]
SOFF = [98, 99, 100] + list(range(20, 36)) + list(range(40, 62))
QB, RB, LB = 62, 65, 73
XR = int(os.environ.get("XR", "2"))
WSC = os.environ.get("WSC", " sc1")
PJ = 64 * 36864
LOG2E = math.log2(math.e)

def xreg(kap, rt):
    if 4 <= kap < 8: return vr(XV + 8 * (kap - 4) + 4 * rt)
    k = kap if kap < 4 else kap - 4
    return ar(8 * k + 4 * rt)

def cost_of(t):
    op = t.split()[0]
    if op.startswith(TRANS): return 8
    if op.startswith("ds_write_b128"): return 12
    if op.startswith("v_mfma"): return 8
    return 4

def greg(kap, rt):
    if 4 <= kap < 8: return XV + 8 * (kap - 4) + 4 * rt
    return GT + 8 * min(kap, 4) + 4 * rt

def kc_jobs():
    early = [k for k in range(36) if k % 9 in (0, 1, 2, 3, 8)]
    oth45 = [k for k in range(9, 36) if k % 9 in (4, 5)]
    oth67 = [k for k in range(9, 36) if k % 9 in (6, 7)]
    jobs = []; start = {}
    def tile(nm, fbase, ks, s, first=True):
        start[nm] = 2 * len(jobs)
        for n, k in enumerate(ks): jobs.append((fbase + k, k, s, first and n == 0, nm))
    for k in range(6):
        tile("E0", 0, [k], 0, first=k == 0); tile("E1", 9, [k], 1, first=k == 0)
    tile("E0", 0, [6, 7, 8], 0, first=False); tile("E1", 9, [6, 7, 8], 1, first=False)
    tile("p0", 18, range(36), 0); tile("p1", 54, range(36), 1); tile("p2", 90, range(36), 0)
    p3o = [4, 5] + early + oth45 + [6, 7] + oth67
    tile("p3", 126, p3o, 1)
    W2 = 162
    tile("q0", W2 + 18, early + [4, 5] + oth45, 0)
    tile("q1", W2 + 54, early[:12], 1)
    tile("q0b", W2 + 18, [6, 7] + oth67, 0, first=False)
    tile("q1b", W2 + 54, [k for k in range(36) if k not in early[:12]], 1, first=False)
    tile("q2", W2 + 90, range(36), 0); tile("q3", W2 + 126, range(36), 1)
    tile("F0", W2 + 0, range(9), 0); tile("F1", W2 + 9, range(9), 1)
    assert len(jobs) == 324
    return jobs, start, early, oth45, oth67, p3o
jobs, start, early, oth45, oth67, p3o = kc_jobs()
NJ = 324
def kc_wload(n):
    f = jobs[n][0]
    return f"buffer_load_dwordx4 {vr(RING+4*(n%NR))}, v{2 if f % 8 < 4 else 13}, s[36:39], s{SOFF[f//8]} offen offset:{1024*(f%4)}{WSC}"

def kc_setup(g, hook):
    cnt = [0]
    def e(t):
        for l in t.strip().split("\n"):
            g.e(l); cnt[0] += 1
            hook(cnt[0])
    e(f"""
    s_mul_i32 s17, s14, 73728
    s_mul_i32 s19, s16, 9216
    s_add_u32 s4, s17, s19
    s_add_u32 s4, s4, {WS_HC}
    s_add_u32 s5, s4, 4096
    s_add_u32 s6, s4, 8192
    v_add_u32 v12, 36864, v2
    s_lshl_b32 s7, s14, 12
    s_add_u32 s7, s7, {WS_SS}""")
    for q in range(3, 41): e(f"s_add_u32 s{SOFF[q]}, s{SOFF[0]}, {8192*q}")
    for q in range(4):
        e(f"""
        s_add_u32 s18, s16, {q}
        s_and_b32 s18, s18, 3
        s_mul_i32 s18, s18, 18432
        v_add_u32 v{3+q}, s18, v2""")
    e(f"""
    s_lshl_b32 s18, s16, 12
    s_add_u32 s18, s18, {SC}
    v_add_u32 v7, s18, v2
    s_lshl_b32 s18, s16, 14
    s_add_u32 s18, s18, {SC}
    v_add_u32 v8, s18, v2
    s_add_u32 s18, s17, {WS_P}
    s_mul_i32 s19, s15, {PJ}
    s_add_u32 s19, s19, s18
    s_and_b32 s90, s16, 1
    s_lshl_b32 s90, s90, 11
    s_add_u32 s19, s19, s90
    s_lshr_b32 s90, s16, 1
    s_add_u32 s91, s90, s15""")
    for q in range(4):
        e(f"""
        s_add_u32 s92, s91, {2*q}
        s_and_b32 s92, s92, 7""")
        if q == 0:
            e("s_cmp_eq_u32 s90, 0")
            e("s_cselect_b32 s92, 8, s92")
        e(f"""
        s_lshl_b32 s92, s92, 12
        s_add_u32 s{QB+q}, s19, s92""")
    e(f"""
    s_lshl_b32 s90, s15, 2
    s_add_u32 s90, s90, s16
    s_lshl_b32 s91, s90, 10
    s_add_u32 s19, s18, s91""")
    for d in range(1, 8):
        e(f"""
        s_sub_u32 s92, s15, {d}
        s_and_b32 s92, s92, 7
        s_mul_i32 s92, s92, {PJ}
        s_add_u32 s{RB+d}, s19, s92""")
    e(f"""
    s_mul_i32 s75, s90, 57
    s_lshr_b32 s75, s75, 9
    s_mul_i32 s75, s75, 9216
    s_add_u32 s75, s75, s91
    s_lshl_b32 s79, s90, 5
    s_add_u32 s79, s79, s17
    s_and_b32 s90, s15, 1
    s_lshr_b32 s91, s15, 1
    s_mul_i32 s92, s90, 36
    s_add_u32 s92, s92, s91
    s_add_u32 s92, s92, 32
    s_lshl_b32 s92, s92, 10
    s_lshl_b32 s93, s16, 7
    s_add_u32 s92, s92, s93
    s_add_u32 s{LB}, s18, s92
    s_add_u32 s{LB+1}, s{LB}, {4*PJ}
    s_mul_i32 s76, s90, 9
    s_add_u32 s76, s76, s91
    s_lshl_b32 s76, s76, 10
    s_add_u32 s76, s76, s93
    s_add_u32 s76, s76, {3*18432+5*1024}
    s_lshl_b32 s92, s90, 2
    s_add_u32 s92, s92, s16
    s_lshl_b32 s84, s92, 5
    s_mul_i32 s80, s92, {8*1152}
    s_add_u32 s80, s80, s17
    s_lshl_b32 s91, s91, 5
    s_add_u32 s80, s80, s91
    s_add_u32 s80, s80, 1024
    s_add_u32 s85, s79, 36864
    s_mov_b32 s81, 0x00003f80
    s_mov_b32 s82, 0x3f800000""")

def kc_body(g, ss, budget=32):
    e = g.e
    groups = []
    for p in range(3):
        fr = [(k, rt) for k in range(3 * p, 3 * p + 3) for rt in range(2)]
        groups.append(([greg(k, rt) + d for k, rt in fr for d in range(4)],
                       [f"buffer_load_dwordx4 {vr(greg(k, rt))}, v{[2,12][rt]}, s[36:39], s{4+k//4} offen offset:{1024*(k%4)} sc1" for k, rt in fr]))
    GH = Gather(g, "hg", groups, 15, 83)
    ss()
    HD = [int(x) for x in os.environ.get("KCH", "100,100,140").split(",")]
    def hook(c):
        for p in range(3):
            if c == HD[p]: GH.issue(p)
    kc_setup(g, hook)
    stamp(g, 4, 0, 36, 88)
    def xread(k, rt):
        return (f"ds_read_b128 {xreg(k, rt)}, v{3+k//9} offset:{XI + 9216*rt + 1024*(k%9)}", f"x{k}")
    def hwrite(src, k, rt):
        return f"ds_write_b128 v3, {src} offset:{XI + 9216*rt + 1024*k}"
    flags = set()
    FQ = deque()
    RQ = deque()
    def fq(t, at=0, tag=None): FQ.append((at, t, tag))
    def barrier(flag, at=0, need=None):
        def f():
            g.wait_all(vm=False); e("s_barrier"); flags.add(flag)
        FQ.append((at, f, need))
    def silu8(R, rt, dst, at=0, cat=0):
        for h in range(2):
            b = R + 4 * h; t = T + 4 * h
            for r in range(4): fq(f"v_mul_f32 v{t+r}, v{b+r}, v{10+rt}", at)
            for r in range(4): fq(f"v_exp_f32 v{t+r}, v{t+r}", at)
            for r in range(4): fq(f"v_add_f32 v{t+r}, 1.0, v{t+r}", at)
            for r in range(4): fq(f"v_rcp_f32 v{t+r}, v{t+r}", at)
            for r in range(4): fq(f"v_mul_f32 v{b+r}, v{b+r}, v{t+r}", at)
        for u in range(4): fq(f"v_cvt_pk_bf16_f32 v{dst+u}, v{R+2*u}, v{R+2*u+1}", max(at, cat))
    def epart(E, s, at):
        for rt in range(2):
            for A in range(2):
                for h in range(2):
                    fq(f"ds_write_b128 v7, {vr(ACC+32*s+16*rt+8*A+4*h)} offset:{16384*(2*E+A)+2048*rt+1024*h}", at)
    def fin_sum(at):
        S1 = ACC + 32
        for rt in range(2):
            for src in range(4):
                for h in range(2):
                    fq(f"ds_read_b128 {vr(S1+8*src+4*h)}, v8 offset:{4096*src+2048*rt+1024*h}", at, tag=f"f{rt}")
            if rt == 1:
                pass
            fq(("waitlg", f"f{rt}"), at)
            for r in range(8): fq(f"v_add_f32 v{F+8*rt+r}, v{S1+r}, v{S1+8+r}", at)
            for r in range(8): fq(f"v_add_f32 v{S1+16+r}, v{S1+16+r}, v{S1+24+r}", at)
            for r in range(8): fq(f"v_add_f32 v{F+8*rt+r}, v{F+8*rt+r}, v{S1+16+r}", at)
    def ostore(R, rt, q, a, at):
        for u in range(4): fq(f"v_cvt_pk_bf16_f32 v{R+u}, v{R+2*u}, v{R+2*u+1}", at)
        for u in range(4): fq(f"v_min_u32 v{R+u}, -2, v{R+u}", at)
        fq(f"buffer_store_dwordx4 {vr(R)}, v{[2,12][rt]}, s[36:39], s{QB+q} offen offset:{1024*a} sc1", at, tag="st")
    slow = []
    ls = LStamp(g, 4, 36, 0, 86)
    def pl(R, d): return [f"buffer_load_dwordx4 {vr(R+4*rt)}, v{[2,12][rt]}, s[36:39], s{RB+d} offen sc1" for rt in range(2)]
    def pcheck(nm, R, loads, at):
        fq(("waitvm", nm), at)
        for t in chk(list(range(R, R + 16)), 15): fq(t, at)
        def br():
            e("v_cmp_eq_u32 vcc, -1, v15")
            e(f"s_cbranch_vccnz k4_slow{nm}")
            g.label(f"k4_back{nm}")
            if PROF and nm != 'S': e(f"s_mov_b32 s{20+'ABCD'.index(nm)}, s83")
        slow.append((nm, R, loads))
        fq(br, at)
    def padd(dst, R, n, first, at):
        for d in range(n):
            for h in range(2): fq(f"v_dot2_f32_bf16 v{dst+2*d+h}, v{R+d}, s{81+h}, {first if first else 'v%d' % (dst+2*d+h)}", at)
    D = 1
    for p in range(3):
        for k in range(3 * p, 3 * p + 3):
            for rt in range(2): fq(hwrite(vr(greg(k, rt)), k, rt), 12 * p)
    barrier("X", 28)
    LS = [f"buffer_load_dwordx4 {vr(T+8*rt+4*h)}, v9, s[36:39], s7 offen offset:{2048*rt+16*h} sc1" for rt in range(2) for h in range(2)]
    for t in LS: fq(t, tag="S")
    epart(0, 0, start["E1"] + D)
    fq(("deadline", start["p0"]))
    epart(1, 1, start["p0"] + D)
    barrier("B2a", 46)
    fin_sum(0)
    fq(("deadline", start["p1"]))
    for t in f"""
    v_add_u32 v{PT+12}, s75, v2
    v_and_b32 v{PT+13}, 0x70, v2
    v_bfe_u32 v{PT+14}, v2, 7, 1
    v_lshrrev_b32 v{PT+15}, 8, v2
    v_lshl_add_u32 v{PT+13}, v{PT+14}, 9, v{PT+13}
    v_lshl_add_u32 v{PT+13}, v{PT+15}, 2, v{PT+13}
    v_add_u32 v{PT+13}, s76, v{PT+13}
    ds_read_b128 {vr(PT)}, v{PT+12}
    ds_read_b128 {vr(PT+4)}, v{PT+12} offset:9216
    ds_read_b32 v{PT+10}, v{PT+13}""".strip().split("\n"): fq(t.strip(), start["p0"] + 20)
    pcheck("S", T, LS, 30 + 2 * NR + 2)
    for rt in range(2):
        b = T + 8 * rt
        for r in range(4): fq(f"v_add_f32 v{b+r}, v{b+r}, v{b+4+r}")
        fq(f"v_add_f32 v{b}, v{b}, v{b+1}"); fq(f"v_add_f32 v{b+2}, v{b+2}, v{b+3}")
    fq(f"v_add_f32 v10, v{T}, v{T+2}"); fq(f"v_add_f32 v11, v{T+8}, v{T+10}")
    fq(f"v_mov_b32 v14, {fhex(1e-5)}")
    fq("v_permlane32_swap_b32 v10, v11")
    fq("v_add_f32 v10, v10, v11")
    fq(f"v_fmac_f32 v14, {fhex(1/576)}, v10")
    fq("v_rsq_f32 v14, v14")
    fq(f"v_mul_f32 v10, {fhex(-LOG2E)}, v14")
    fq(f"v_mul_f32 v11, {fhex(-LOG2E)}, v14")
    fq("v_permlane32_swap_b32 v10, v11")
    LF = [f"v_lshlrev_b32 v{SUM}, 1, v9", f"s_mov_b32 s17, {WS_FL+32}", f"buffer_load_dwordx4 {vr(SUM)}, v{SUM}, s[36:39], s17 offen sc1"]
    for t in LF: fq(t, tag="fb")
    barrier("B2b", need="xdone")
    for rt in range(2):
        silu8(F + 8 * rt, rt, F + 8 * rt); fq(hwrite(vr(F + 8 * rt), 8, rt))
    for p in range(4):
        s = p % 2; at = start[["p1", "p2", "p3", "q0"][p]] + D
        for a in range(2):
            for rt in range(2):
                R = ACC + 32 * s + 16 * rt + 8 * a
                dst = R if p < 2 else XV + 8 * (2 * p + a - 4) + 4 * rt
                silu8(R, rt, dst, at, cat=at + 4)
                fq(hwrite(vr(dst), 2 * p + a, rt), at)
        fq(("deadline", start[["p2", "p3", "q0", "q1"][p]]))
        if p >= 1: barrier(f"H{p}")
    def oepi(q, s, at, sp=0):
        for a in range(2):
            for rt in range(2): ostore(ACC + 32 * s + 16 * rt + 8 * a, rt, q, a, at + sp * (2 * a + rt))
    for t in f"""
    v_bfe_u32 v{T+4}, v2, 4, 5
    v_lshlrev_b32 v{T+5}, 2, v{T+4}
    v_mul_u32_u24 v{T}, 1152, v{T+4}
    v_lshrrev_b32 v{T+4}, 9, v2
    v_lshl_add_u32 v{T}, v{T+4}, 4, v{T}
    v_and_b32 v{T+6}, 0x70, v2
    v_bfe_u32 v{T+7}, v2, 7, 1
    v_lshrrev_b32 v{T+4}, 8, v2
    v_lshl_add_u32 v{T+2}, v{T+7}, 9, v{T+6}
    v_mul_u32_u24 v{T+1}, {PJ}, v{T+4}
    v_add_u32 v{T+1}, v{T+1}, v{T+2}
    v_mul_u32_u24 v{T+3}, 72, v{T+6}
    v_lshl_add_u32 v{T+3}, v{T+7}, 4, v{T+3}
    v_lshl_add_u32 v{T+3}, v{T+4}, 2, v{T+3}
    v_lshrrev_b32 v{T+6}, 2, v{T+6}
    v_add_u32 v{T+6}, s84, v{T+6}
    v_add_u32 v{T+5}, {MISC}, v{T+5}
    v_add_u32 v{T+4}, {MISC}, v{T+6}
    v_mul_f32 v10, {fhex(-1/LOG2E)}, v10
    v_mul_f32 v11, {fhex(-1/LOG2E)}, v11""".strip().split("\n"): fq(t.strip())
    for rt in range(2): fq(f"ds_read_b32 v{PT+8+rt}, v{T+5} offset:{128*rt}")
    fq(f"ds_read_b32 v{PT+11}, v{T+4}")
    fq(f"ds_bpermute_b32 v14, v{T+6}, v14", tag="bp")
    fq(("waitlg", "bp"))
    for rt in range(2): padd(BASE[rt], PT + 4 * rt, 4, f"v{PT+8+rt}", 0)
    padd(T + 4, PT + 10, 1, f"v{PT+11}", 0)
    TA, TB, TC, TD = [int(x) for x in os.environ.get("K4T", "30,4,60,4").split(",")]
    fq(("waitvm", "fb"))
    FC = [f"v_min3_u32 v{SUM}, v{SUM}, v{SUM+1}, v{SUM+2}", f"v_min_u32 v{SUM}, v{SUM}, v{SUM+3}", f"v_cmp_eq_u32 vcc, 0, v{SUM}"]
    for t in FC[:2]: fq(t)
    def fbr():
        e(FC[2]); e("s_cbranch_vccnz kc_fslow"); g.label("kc_fback")
    fq(fbr)
    oepi(0, 0, start["q1b"] + D, 8)
    fq(("deadline", start["q2"]))
    oepi(1, 1, start["q2"] + D, 8)
    LA = pl(PT, 1) + [f"buffer_load_dwordx4 {vr(PT+8+4*h)}, v{T+1}, s[36:39], s{LB+h} offen sc1" for h in range(2)]
    LBq = pl(F, 2) + pl(F + 8, 3); LC = pl(PT, 4) + pl(PT + 8, 5); LD = pl(F, 6) + pl(F + 8, 7)
    for k, t in enumerate(LA): fq(t, start["q2"] + TA + 2 * k, tag="A")
    fq(("deadline", start["q3"]))
    oepi(2, 0, start["q3"] + D, 3)
    for k, t in enumerate(LBq): fq(t, start["q3"] + TB + k, tag="B")
    pcheck("A", PT, LA, start["q2"] + TA + 2 * NR + 8)
    padd(SUM, PT, 8, "0", 0)
    padd(PT, PT + 8, 4, "0", 0); padd(PT, PT + 12, 4, None, 0)
    for r in range(4): fq(f"v_permlane32_swap_b32 v{PT+r}, v{PT+4+r}")
    for r in range(4): fq(f"v_add_f32 v{PT+r}, v{PT+r}, v{PT+4+r}")
    for r in range(2): fq(f"v_permlane16_swap_b32 v{PT+r}, v{PT+2+r}")
    for r in range(2): fq(f"v_add_f32 v{PT+r}, v{PT+r}, v{PT+2+r}")
    for r in range(2): fq(f"v_fmac_f32 v{T+4+r}, v{PT+r}, v14")
    fq(f"v_cvt_pk_bf16_f32 v{T+4}, v{T+4}, v{T+5}")
    fq(f"buffer_store_dword v{T+4}, v{T+3}, s[8:11], s80 offen", tag="st")
    pcheck("B", F, LBq, start["q3"] + max(TB, 12) + 2 * NR + 4)
    padd(SUM, F, 8, None, 0)
    for k, t in enumerate(LC): fq(t, start["q3"] + TC + k, tag="C")
    padd(SUM, F + 8, 8, None, 0)
    fq(("deadline", start["F0"]))
    oepi(3, 1, start["F0"] + D)
    fq(("deadline", start["F1"]))
    epart(0, 0, start["F1"] + D)
    pcheck("C", PT, LC, start["q3"] + TC + 2 * NR + 2)
    padd(SUM, PT, 8, None, 0)
    for k, t in enumerate(LD): fq(t, 2 * NJ - TD, tag="D")
    padd(SUM, PT + 8, 8, None, 0)
    epart(1, 1, 2 * NJ)
    barrier("B5", 2 * NJ)
    fq(lambda: ls(9))
    for rt in range(2):
        for src in range(4):
            for h in range(2):
                fq(f"ds_read_b128 {vr(ACC+32*rt+8*src+4*h)}, v8 offset:{4096*src+2048*rt+1024*h}", 2 * NJ, tag=f"f{rt}")
    def pk(op, d, a, b, c=None, sel=""):
        fq(f"{op} {vr(d,2)}, {a}, {b}" + (f", {c}" if c else "") + sel)
    for rt in range(2):
        A = ACC + 32 * rt
        fq(("waitlg", f"f{rt}"))
        for r in range(0, 8, 2): pk("v_pk_add_f32", A + r, vr(A + r, 2), vr(A + 8 + r, 2))
        for r in range(0, 8, 2): pk("v_pk_add_f32", A + 16 + r, vr(A + 16 + r, 2), vr(A + 24 + r, 2))
        for r in range(0, 8, 2): pk("v_pk_add_f32", A + r, vr(A + r, 2), vr(SUM + 8 * rt + r, 2))
        for r in range(0, 8, 2): pk("v_pk_add_f32", SUM + 8 * rt + r, vr(A + r, 2), vr(A + 16 + r, 2))
    fq(lambda: ls(10))
    pcheck("D", F, LD, 0)
    fq(lambda: ls(11))
    for rt in range(2):
        padd(SUM + 8 * rt, F + 4 * rt, 4, None, 0); padd(SUM + 8 * rt, F + 8 + 4 * rt, 4, None, 0)
        for r in range(0, 8, 2):
            pk("v_pk_fma_f32", BASE[rt] + r, vr(SUM + 8 * rt + r, 2), "v[10:11]", vr(BASE[rt] + r, 2), f" op_sel:[0,{rt},0] op_sel_hi:[1,{rt},1]")
        for u in range(4): fq(f"v_cvt_pk_bf16_f32 v{BASE[rt]+u}, v{BASE[rt]+2*u}, v{BASE[rt]+2*u+1}")
        fq(f"buffer_store_dwordx4 {vr(BASE[rt])}, v{T}, s[8:11], s{[79,85][rt]} offen")
    for k in list(range(9, 36)) + [0, 1, 2, 3, 8]:
        for rt in range(2): RQ.append((lambda s: "X" in flags,) + xread(k, rt))
    RQ.append((lambda s: True, "flag", "xdone"))
    p3slot = {k: start["p3"] + 2 * n for n, k in enumerate(p3o)}
    for ks, fl in ((early, "H1"), (oth45, "H2"), (oth67, "H3")):
        for k in ks:
            for rt in range(2):
                RQ.append((lambda s, k=k, rt=rt, fl=fl: fl in flags and s >= p3slot[k] + rt,) + xread(k, rt))
    def rq_pop(slot, n):
        c = 0
        while n > 0 and RQ and RQ[0][0](slot):
            _, t, tag = RQ.popleft()
            if t == "flag": flags.add(tag); continue
            e(t, tag=tag); n -= 1; c += 4; nrd[tag] = nrd.get(tag, 0) + 1
        while RQ and RQ[0][1] == "flag": flags.add(RQ.popleft()[2])
        return c
    def fq_pop(slot, room):
        while FQ:
            at, t, tag = FQ[0]
            if at > slot: break
            if callable(t):
                if tag and tag not in flags: break
                if room < 8: break
                FQ.popleft(); t(); room -= 8; continue
            if isinstance(t, tuple):
                if t[0] == "deadline":
                    assert slot < t[1], ("deadline missed", slot, t[1]); FQ.popleft(); print("k4 deadline", t[1], "met at", slot); continue
                if t[0] == "waitlg" and pend.get(t[1], -99) + 6 > slot and slot < 2 * NJ: break
                if room < 4: break
                FQ.popleft()
                if t[0] == "waitlg": g.wait(lg=t[1])
                else: g.wait(vm=t[1])
                room -= 4; continue
            c = cost_of(t)
            if c > room or g.need(Ins(t)) > 0:
                sk_r = set(); sk_w = set(); found = None
                for idx in range(min(len(FQ), 14)):
                    at2, t2, tag2 = FQ[idx]
                    if not isinstance(t2, str): break
                    i2 = Ins(t2)
                    if idx and at2 <= slot and cost_of(t2) <= room and t2.startswith("v_") and g.need(i2) == 0 \
                       and not (set(i2.r) & sk_w) and not (set(i2.w) & (sk_r | sk_w)):
                        found = idx; break
                    sk_r |= set(i2.r); sk_w |= set(i2.w)
                if found is None:
                    if c > room or slot < 2 * NJ: break
                else:
                    t2 = FQ[found][1]; del FQ[found]; e(t2); room -= cost_of(t2); continue
            FQ.popleft(); e(t, tag=tag); room -= c
            if tag: pend[tag] = slot
    pend = {}
    STP = {324: 2, 468: 3, 540: 4, 576: 5, 612: 6, 630: 7}
    nrd = {}
    g.log_nops = True
    for n, (f, k, s, first, nm) in enumerate(jobs):
        for rt in range(2):
            slot = 2 * n + rt
            room = budget - 8
            if slot in STP: (ls(STP[slot]) if slot > 540 else stamp(g, 4, STP[slot], 36, 0))
            own = slot < start["p1"] and k < 9
            if slot in (0, 12, 24):
                g.log_nops = False
                GH.check(slot // 12)
                if slot == 0: stamp(g, 4, 13, 36, 0)
                if slot == 24:
                    stamp(g, 4, 1, 36, 0)
                    if PROF: e("v_mov_b32 v0, s83"); e("s_sub_u32 s0, s3, 0x100000"); g.raw("    buffer_store_dword v0, off, s[36:39], s0 offset:124")
                g.log_nops = True
            if rt == 0:
                if not own and not 4 <= k < 8: assert nrd.get(f"x{k}", 0) == (4 if nm[0] in "qF" else 2), ("read not issued", nm, k)
                g.wait(vm=f"w{n}", lg=None if own else f"x{k}"); room -= 4
            A = vr(ACC + 32 * s + 16 * rt, 16)
            e(f"v_mfma_f32_32x32x16_bf16 {A}, {vr(RING+4*(n%NR))}, {vr(greg(k, rt)) if own else xreg(k, rt)}, {'0' if first else A}")
            if rt == 1 and n + NR < NJ: e(kc_wload(n + NR), tag=f"w{n+NR}"); room -= 4
            if slot < 42: room += 8
            room -= rq_pop(slot, 1 if "xdone" in flags or slot < 42 else XR)
            fq_pop(slot, room)
    g.log_nops = False
    ls(8)
    fq_pop(2 * NJ, 10000)
    assert not FQ and not RQ
    stamp(g, 4, 12, 36, 0)
    ls.flush()
    if PROF:
        for k in range(4):
            e(f"v_mov_b32 v0, s{20+k}")
            e(f"buffer_store_dword v0, off, s[36:39], s3 offset:{112+4*k}")
    e("s_endpgm")
    for nm, R, loads in slow:
        g.label(f"k4_slow{nm}")
        e("s_cmp_eq_u32 s83, 0")
        e(f"s_cbranch_scc1 k4_back{nm}")
        e("s_sub_u32 s83, s83, 1")
        for t in loads: e(t)
        e("s_waitcnt vmcnt(0)")
        for t in chk(list(range(R, R + 16)), 15): e(t)
        e("v_cmp_eq_u32 vcc, -1, v15")
        e(f"s_cbranch_vccnz k4_slow{nm}")
        e(f"s_branch k4_back{nm}")
    GH.slow()
    g.label("kc_fslow")
    e("s_cmp_eq_u32 s83, 0")
    e("s_cbranch_scc1 kc_fback")
    e("s_sub_u32 s83, s83, 1")
    for t in LF: e(t)
    e("s_waitcnt vmcnt(0)")
    for t in FC: e(t)
    g.drain()
    e("s_cbranch_vccnz kc_fslow")
    e("s_branch kc_fback")
```

```python
from common import *
XI, WQA, WL, KVI = 0, 73728, 122880, 132096
ZA, STM, STP = MISC, MISC + 128, MISC + 256
QX = 24576
X, RING, ACC, ACL, CSM, CSL, XA, SEL, ONES = 16, 160, 192, 208, 212, 216, 220, 224, 228
QM, QL = 16, 48
NS = int(os.environ.get("P1NS", "3"))
NQ = int(os.environ.get("P1NQ", "6"))
FLK = int(os.environ.get("P1FLK", "8"))
CLR = min(b for b in range(256) if ij_of(b)[1] >= 4)
NE = int(os.environ.get("P1NE", "16"))
QB = [2, 4, 6]
OB = int(os.environ.get("P1OB", "2"))
CE, CT = [int(x) for x in os.environ.get("P1C", "22,32").split(",")]
PK = int(os.environ.get("P1PK", "30"))
Q = {}

def p1_issue(g):
    e = g.e
    e("s_load_dwordx16 s[64:79], s[0:1], 0")
    e("s_load_dwordx4 s[8:11], s[0:1], 72")
    e("s_load_dwordx2 s[12:13], s[0:1], 64")
    map_ij(g)
    e(f"""
    v_lshrrev_b32 v2, 6, v0
    v_and_b32 v1, 63, v0
    s_mov_b32 s42, 0x3f803f80
    v_readfirstlane_b32 s16, v2
    v_lshrrev_b32 v3, 3, v1
    v_and_b32 v4, 7, v1
    v_lshrrev_b32 v5, 4, v1
    v_mul_u32_u24 v6, 1152, v3
    s_and_b32 s17, s16, 1
    s_lshl_b32 s17, s17, 2
    v_or_b32 v5, s17, v5
    v_xor_b32 v5, v5, v4
    v_lshl_add_u32 v5, v5, 4, v6
    v_mul_u32_u24 v7, 43, v1
    v_lshrrev_b32 v7, 7, v7
    v_mul_u32_u24 v8, 12, v7
    v_lshlrev_b32 v7, 4, v1
    v_sub_u32 v7, v7, v8
    s_lshl_b32 s17, s14, 3
    s_and_b32 s18, s15, 1
    s_lshl_b32 s18, s18, 2
    s_add_u32 s17, s17, s16
    s_add_u32 s17, s17, s18
    s_mul_i32 s98, s17, 9216
    s_xor_b32 s17, s17, 4
    s_mul_i32 s99, s17, 9216
    s_mul_i32 s100, s16, 9216
    s_mul_i32 s101, s16, 768
    s_mul_i32 s40, s16, 576
    s_mov_b32 s34, 2359296
    s_mov_b32 s35, 0x00020000
    s_cmp_lt_u32 s15, 4
    s_cselect_b32 s6, 20736, 0
    s_mov_b32 s7, 0x00020000
    s_cmp_lt_u32 s15, 2
    s_waitcnt lgkmcnt(0)
    s_mov_b32 s32, s64
    s_mov_b32 s33, s65
    s_cselect_b32 s4, s68, s70
    s_cselect_b32 s5, s69, s71""")
    srd(g, 36, 10, WS_SIZE)
    e(f"""
    s_lshl_b32 s17, s2, 2
    s_add_u32 s17, s17, s16
    s_cmp_eq_u32 s17, {4*CLR}
    s_cbranch_scc0 p1_noclr
    s_mov_b32 s10, 256
    s_mov_b32 s11, 0x00020000
    v_mov_b32 v10, 0
    v_mov_b32 v11, 0
    v_mov_b32 v12, 0
    v_mov_b32 v13, 0
    v_lshlrev_b32 v9, 6, v1
    s_mov_b32 s17, {WS_FL}
    buffer_store_dwordx2 v[10:11], v9, s[36:39], s17 offen sc1
    buffer_store_dwordx4 v[10:13], v9, s[36:39], s17 offen offset:16 sc1
    buffer_store_dwordx4 v[10:13], v9, s[36:39], s17 offen offset:32 sc1
    s_mov_b64 exec, 1
    v_mov_b32 v9, 1
    s_waitcnt vmcnt(0)
    buffer_store_dword v9, off, s[8:11], 0 sc1
    s_mov_b64 exec, -1""")
    g.label("p1_noclr")
    g.vmq = []
    for n in range(9):
        e(f"s_add_u32 m0, s100, {XI + 896*n}")
        e(f"s_add_u32 s17, s40, {2304*n}")
        e(f"buffer_load_dwordx4 v5, s[32:35], s98 offen offset:{128*n} lds", tag=f"s{n}")
        e(f"s_add_u32 m0, s101, {KVI + 3072*n}")
        e("s_mov_b32 exec_hi, 0xffff")
        e(f"buffer_load_dwordx4 v7, s[4:7], s17 offen lds", tag=f"s{n}")
        e("s_mov_b32 exec_hi, -1")
    for n in range(9):
        e(f"s_add_u32 m0, s100, {XI + 36864 + 896*n}")
        e(f"buffer_load_dwordx4 v5, s[32:35], s99 offen offset:{128*n} lds", tag="xo")
    srd(g, 56, 66, 663552)
    srd(g, 64, 8, 256)
    srd(g, 8, 12, 2359296)
    srd(g, 4, 72, 663552)

def qtag(row):
    return f"q{min(row // (576 // NQ), NQ - 1)}"
def wq_main(g, u):
    base = WQA + 3072 * u if u < 16 else XI + 3072 * (u - 16)
    g.e(f"s_add_u32 m0, s41, {base}")
    g.e(f"s_add_u32 s17, s40, {27648*u}")
    g.e(f"buffer_load_dwordx4 v232, s[56:59], s17 offen lds", tag=qtag(24 * u))
def wq_left(g, u):
    g.e(f"s_add_u32 m0, s99, {WL + 768*u}")
    g.e(f"s_add_u32 s17, s98, {55296*u}")
    g.e(f"buffer_load_dword v13, s[56:59], s17 offen lds", tag=qtag(48 * u))
def wq_range(g, u0, u1):
    for u in range(u0, u1):
        wq_main(g, u)
        if u % 2 == 1: wq_left(g, u // 2)

def p1_compute(g):
    e = g.e
    ls = LS2(g, 36, 254, {1: 46, 2: 48, 3: 50, 4: 52, 5: 72, 6: 74, 7: 76, 8: 78})
    Q["ls"] = ls
    e(f"""
    v_lshrrev_b32 v8, 2, v1
    v_and_b32 v9, 4, v8
    v_and_b32 v4, 7, v1
    v_xor_b32 v9, v9, v4
    v_lshrrev_b32 v10, 1, v9
    v_and_b32 v9, 1, v9
    v_lshrrev_b32 v6, 3, v1
    v_mul_u32_u24 v6, 1152, v6
    v_mad_u32_u24 v6, v10, 36, v6
    v_lshl_add_u32 v232, v9, 4, v6
    v_and_b32 v9, 3, v1
    v_mul_u32_u24 v8, 1152, v8
    v_mad_u32_u24 v13, v9, 36, v8
    s_sub_u32 s17, s16, 1
    s_mul_i32 s18, s15, 144
    s_mul_i32 s40, s17, 9216
    s_add_u32 s40, s40, s18
    s_lshl_b32 s41, s17, 10
    s_mul_i32 s98, s17, 18432
    s_add_u32 s98, s98, s18
    s_add_u32 s98, s98, 32
    s_lshl_b32 s99, s17, 8""")
    e(f"""
    v_and_b32 v4, 31, v1
    v_lshrrev_b32 v5, 5, v1
    v_bfe_u32 v6, v1, 2, 2
    v_lshl_add_u32 v6, v5, 3, v6
    v_and_b32 v7, 3, v1
    v_bfe_u32 v8, v1, 4, 1
    v_lshrrev_b32 v9, 3, v4
    v_mul_u32_u24 v9, 9216, v9
    v_and_b32 v10, 7, v4
    v_lshl_add_u32 v9, v10, 7, v9
    v_bfe_u32 v10, v4, 1, 3
    v_xor_b32 v10, v10, v5""")
    for q in range(4):
        e(f"v_xor_b32 v11, {2*q}, v10")
        e(f"v_lshl_add_u32 v{XA+q}, v11, 4, v9")
    e(f"""
    s_lshr_b32 s17, s16, 1
    v_bfe_u32 v9, v1, 3, 1
    v_xor_b32 v9, s17, v9
    v_lshlrev_b32 v9, 6, v9
    v_lshl_add_u32 v9, v8, 5, v9
    v_lshl_add_u32 v9, v7, 3, v9
    v_lshl_add_u32 v14, v6, 7, v9
    v_add_u32 v233, {WQA}, v14
    s_lshl_b32 s17, s17, 3
    s_add_u32 s17, s17, {WL}
    v_lshl_add_u32 v9, v6, 4, s17
    v_and_b32 v10, 1, v7
    v_cmp_eq_u32 vcc, v10, v8
    v_mov_b32 v11, {ZA}
    v_mov_b32 v12, 256
    v_cndmask_b32 v234, v11, v9, vcc
    v_cndmask_b32 v235, 0, v12, vcc
    v_bfe_u32 v9, v1, 2, 1
    v_cmp_eq_u32 vcc, v9, v8
    v_mov_b32 v{ONES}, s42
    v_mov_b32 v{ONES+1}, s42
    v_mov_b32 v{ONES+2}, s42
    v_mov_b32 v{ONES+3}, s42""")
    for k in range(4): e(f"v_cndmask_b32 v{SEL+k}, 0, v{ONES}, vcc")
    MO = lambda a: a - 131072
    e(f"""
    v_lshrrev_b32 v9, 1, v7
    v_lshl_add_u32 v9, v10, 1, v9
    s_cmp_lt_u32 s15, 2
    s_cselect_b64 vcc, -1, 0
    v_cndmask_b32 v9, v9, v7, vcc
    v_cmp_eq_u32 vcc, 0, v8
    v_cndmask_b32 v9, 4, v9, vcc
    v_mul_u32_u24 v15, 48, v6
    v_lshl_add_u32 v15, v9, 3, v15
    v_add_u32 v15, {KVI}, v15
    v_mov_b32 v9, 0
    s_mov_b32 s17, 0x20000
    v_lshl_add_u32 v12, v4, 2, s17
    v_lshl_add_u32 v8, v4, 3, s17
    v_add_u32 v7, s17, v2
    ds_write_b32 v12, v9 offset:{MO(ZA)}
    s_lshr_b32 s17, s15, 1
    s_add_u32 s55, s17, 1
    s_cmp_lt_u32 s15, 4
    s_cselect_b32 s55, s55, 0
    s_cmp_eq_u32 s16, 0
    s_cselect_b32 s54, s55, 0
    s_lshl_b32 s22, s14, 1
    s_and_b32 s17, s15, 1
    s_add_u32 s22, s22, s17
    s_mul_i32 s23, s22, 2304
    s_add_u32 s23, s23, {WS_KV}
    s_mov_b32 s63, 0x40000""")
    stamp(g, 1, 0, 36, 254)
    SK = 36 // NS; HK = SK // 2
    PART = KVI + 768 * HK
    assert 768 * HK >= 4352
    def xread(s, reg=0, tag=None): e(f"ds_read_b128 {vr(X+4*s)}, v{XA+s%4} offset:{36864*reg+1024*(s//4)}", tag=tag or f"k{s}")
    def sbar(c):
        g.wait(vm=f"s{(c + 1) * SK // 4 - 1}"); e("s_barrier")
        if c == 0: ls(1)
        if c == NS - 1: e("buffer_load_dword v255, off, s[64:67], 0 sc1", tag="mark")
    def corr_b(nm, dst):
        e(f"""
        v_cvt_pk_bf16_f32 v{dst}, v{nm}, v{nm}
        v_cmp_gt_u32 vcc, 32, v1
        v_lshlrev_b32 v{dst}, 16, v{dst}
        v_sub_f32 v{dst}, v{nm}, v{dst}
        v_cvt_pk_bf16_f32 v{dst}, v{nm}, v{dst}
        v_cndmask_b32 v{dst}, 0, v{dst}, vcc
        v_mov_b32 v{dst+1}, v{dst}""")
    def corr_a(cs, dst):
        e(f"""
        v_cvt_pk_bf16_f32 v{dst}, v{cs}, v{cs}
        v_lshlrev_b32 v{dst+1}, 16, v{dst}
        v_sub_f32 v{dst+1}, v{cs}, v{dst+1}
        v_cvt_pk_bf16_f32 v{dst+1}, v{dst+1}, v{dst+1}""")
    def get_stats(slot, t):
        for k in range(2): e(f"ds_read_b64 {vr(t+2*k,2)}, v8 offset:{MO(STP)+512*slot+256*k}", tag="st")
    def fin_stats(t):
        g.wait(lg="st")
        e(f"""
        v_add_f32 v10, v{t}, v{t+2}
        v_add_f32 v11, v{t+1}, v{t+3}
        v_mul_f32 v10, {fhex(-1/576)}, v10
        v_mul_f32 v11, {fhex(1/576)}, v11
        v_fma_f32 v11, -v10, v10, v11
        v_add_f32 v11, {fhex(1e-5)}, v11
        v_rsq_f32 v11, v11""")
    def dots(s, first):
        for d in range(4):
            a = RING + 2 * (d % 2)
            e(f"v_dot2_f32_bf16 v{a}, v{X+4*s+d}, s42, {'0' if first and d < 2 else 'v%d' % a}")
            e(f"v_dot2_f32_bf16 v{a+1}, v{X+4*s+d}, v{X+4*s+d}, {'0' if first and d < 2 else 'v%d' % (a+1)}")
    def dots_end(slot, k):
        e(f"""
        v_add_f32 v{RING}, v{RING}, v{RING+2}
        v_add_f32 v{RING+1}, v{RING+1}, v{RING+3}
        v_mov_b32 v{RING+2}, v{RING}
        v_mov_b32 v{RING+3}, v{RING+1}
        v_permlane32_swap_b32 v{RING}, v{RING+2}
        v_permlane32_swap_b32 v{RING+1}, v{RING+3}
        v_add_f32 v{RING}, v{RING}, v{RING+2}
        v_add_f32 v{RING+1}, v{RING+1}, v{RING+3}
        ds_write_b64 v8, {vr(RING,2)} offset:{MO(STP)+512*slot+256*k}""")
    def sphase(half, kind):
        ks = [s for s in range(36) if (s % SK) // HK == half]
        LA = 3 if kind in "KV" else 4
        if kind in "KV": e("s_setprio 2")
        def issue(n):
            s = ks[n]
            if n % HK == 0: sbar(n // HK)
            if kind in "KV":
                b = RING + 4 * (n % 4)
                e(f"ds_read_b64_tr_b16 {vr(b,2)}, v15 offset:{768*s}", tag=f"k{s}")
                e(f"ds_read_b64_tr_b16 {vr(b+2,2)}, v15 offset:{768*s+192}", tag=f"k{s}")
            if kind != "N" or half == 0: xread(s)
        for n in range(LA): issue(n)
        for n, s in enumerate(ks):
            b = RING + 4 * (n % 4)
            if kind != "N": g.wait(lg=f"k{s}")
            if kind in "KV":
                A, B = (vr(X+4*s), vr(b)) if kind == "V" else (vr(b), vr(X+4*s))
                e(f"v_mfma_f32_32x32x16_bf16 {vr(ACC,16)}, {A}, {B}, {'0' if n == 0 else vr(ACC,16)}")
            if n + LA < 18: issue(n + LA)
            if kind in "KV":
                e(f"v_mfma_f32_16x16x32_bf16 {vr(CSM)}, {vr(SEL)}, {vr(b)}, {'0' if n == 0 else vr(CSM)}")
            if half == 0: xread(s + HK, tag="-")
            if kind == "S": dots(s, n == 0)
        if kind == "S": dots_end(0, half)
        if kind in "KV" and half == 1:
            e(f"ds_write_b32 v12, v{CSM} offset:{MO(PART)+4096}")
            for q in range(4 if kind == "V" else 3): e(f"ds_write_b128 v7, {vr(ACC+4*q)} offset:{MO(PART)+1024*q}")
            e("s_setprio 0")
    def sc(w0):
        g.wait(vm="xo" if w0 else f"q{QB[0]-1}"); g.wait_all(vm=False)
        e("s_barrier"); ls(2)
    def prod(kind):
        get_stats(0, RING + 4)
        e(f"ds_read_b32 v{RING+2}, v12 offset:{MO(PART)+4096}", tag="c")
        nq = 4 if kind == "V" else 3
        for q in range(nq): e(f"ds_read_b128 {vr(RING+8+4*q)}, v7 offset:{MO(PART)+1024*q}", tag="p")
        fin_stats(RING + 4)
        if kind == "V":
            e(f"ds_write_b32 v12, v11 offset:{MO(STM)}")
            e(f"v_lshlrev_b32 v9, 4, v5")
            e(f"v_add_u32 v9, 0x20000, v9")
        g.wait(lg="c")
        e(f"v_add_f32 v{CSM}, v{CSM}, v{RING+2}")
        corr_a(CSM, RING)
        corr_b(10, RING + 2)
        g.wait(lg="p")
        for r in range(16 if kind == "V" else 10): e(f"v_add_f32 v{ACC+r}, v{ACC+r}, v{RING+8+r}")
        if kind == "V":
            for q in range(4): e(f"ds_read_b128 {vr(RING+8+4*q)}, v9 offset:{MO(STM)+32*q}", tag="r")
        A, B = (vr(RING+2,2), vr(RING,2)) if kind == "V" else (vr(RING,2), vr(RING+2,2))
        e(f"v_mfma_f32_32x32x8bf16_1k {vr(ACC,16)}, {A}, {B}, {vr(ACC,16)}")
    e("""
    s_cmp_lg_u32 s16, 0
    s_cbranch_scc1 p1_r123
    s_cmp_eq_u32 s55, 1
    s_cbranch_scc1 p1_rk
    s_cmp_eq_u32 s55, 2
    s_cbranch_scc1 p1_rv""")
    lq0 = list(g.lgq); vq0 = list(g.vmq)
    sphase(0, "N"); sc(True)
    get_stats(0, RING); fin_stats(RING)
    e("s_branch p1_qe")
    g.label("p1_rk")
    g.vmq = list(vq0); g.lgq = list(lq0)
    sphase(0, "K"); sc(True); prod("K")
    e(f"""
    s_lshr_b32 s17, s22, 2
    s_lshl_b32 s17, s17, 10
    s_and_b32 s18, s22, 3
    s_lshl_b32 s18, s18, 2
    s_add_u32 s17, s17, s18
    s_add_u32 s17, s17, {WS_KL}
    s_lshl_b32 s22, s22, 6
    s_add_u32 s22, s22, {WS_FL}""")
    for r in range(10): e(f"v_mul_f32 v{ACC+r}, v{ACC+r}, v11")
    for u in range(5): e(f"v_cvt_pk_bf16_f32 v{RING+u}, v{ACC+2*u}, v{ACC+2*u+1}")
    e(f"buffer_store_dwordx4 {vr(RING)}, v2, s[36:39], s23 offen sc1")
    e(f"v_cndmask_b32 v{RING+4}, v{ONES}, v{RING+4}, vcc")
    e(f"buffer_store_dword v{RING+4}, v2, s[36:39], s17 offen sc1")
    e(f"v_mul_f32 v13, v{ACC}, v{ACC}")
    for r in range(1, 8): e(f"v_fmac_f32 v13, v{ACC+r}, v{ACC+r}")
    e(f"""
    v_mov_b32 v9, v13
    v_permlane32_swap_b32 v9, v13
    v_add_f32 v13, v13, v9
    v_fmac_f32 v13, v{ACC+8}, v{ACC+8}
    v_fmac_f32 v13, v{ACC+9}, v{ACC+9}
    v_mov_b32 v9, v13
    v_permlane16_swap_b32 v9, v13
    v_max_u32 v13, v13, v9""")
    for sh in (8, 4, 2, 1):
        e(f"v_max_u32_dpp v13, v13, v13 row_ror:{sh} row_mask:0xf bank_mask:0xf")
    e(f"""
    v_or_b32 v13, 1, v13
    s_setprio 0
    s_branch p1_qe""")
    g.label("p1_rv")
    g.vmq = list(vq0); g.lgq = list(lq0)
    sphase(0, "V"); sc(True); prod("V")
    e(f"""
    v_mul_u32_u24 v9, 320, v5
    v_lshl_add_u32 v9, v4, 4, v9
    v_cmp_lt_u32 vcc, 17, v4
    s_lshl_b32 s22, s22, 6
    s_add_u32 s22, s22, {WS_FL+4}
    v_mov_b32 v13, 1""")
    g.wait(lg="r")
    for r in range(16): e(f"v_mul_f32 v{ACC+r}, v{ACC+r}, v{RING+8+r}")
    for u in range(8): e(f"v_cvt_pk_bf16_f32 v{RING+u}, v{ACC+2*u}, v{ACC+2*u+1}")
    for u in range(8): e(f"v_cndmask_b32 v{RING+u}, v{RING+u}, v{ONES}, vcc")
    e("s_mov_b32 exec_lo, 0x000fffff")
    e("s_mov_b32 exec_hi, 0x000fffff")
    for a in range(2):
        e(f"buffer_store_dwordx4 {vr(RING+4*a)}, v9, s[36:39], s23 offen offset:{1024+640*a} sc1")
    e("s_mov_b64 exec, -1")
    e("s_setprio 0")
    e("s_branch p1_qe")
    g.label("p1_r123")
    g.vmq = list(vq0); g.lgq = list(lq0)
    wq_range(g, 0, NE)
    vq1 = list(g.vmq)
    e("""
    s_cmp_eq_u32 s16, 2
    s_cbranch_scc1 p1_r2
    s_cmp_eq_u32 s16, 3
    s_cbranch_scc1 p1_r3
    s_cmp_eq_u32 s55, 1
    s_cbranch_scc1 p1_r1k
    s_cmp_eq_u32 s55, 2
    s_cbranch_scc1 p1_r1v""")
    sphase(1, "N"); e("s_branch p1_o")
    for lab, kind in (("p1_r1k", "K"), ("p1_r1v", "V"), ("p1_r3", "S")):
        g.label(lab); g.vmq = list(vq1); g.lgq = list(lq0)
        sphase(1, kind)
        if kind != "S": e("s_branch p1_o")
    LA = 3; QK = 36 // NQ
    CS2, CSP = X, X + 8
    def flag(par):
        if par == 0:
            e("s_cmp_eq_u32 s16, 0")
            e("s_cbranch_scc0 p1_nw0")
            e("s_waitcnt vmcnt(0)")
            g.label("p1_nw0")
        g.wait(vm="mark")
        g.label(f"p1_mk{par}")
        e(f"""
        v_readfirstlane_b32 s17, v255
        s_cmp_lg_u32 s17, 0
        s_cbranch_scc0 p1_mkslow{par}""")
        g.label(f"p1_mkok{par}")
        if par == 0:
            e("s_cmp_eq_u32 s54, 0")
            e("s_cbranch_scc1 p1_nofl")
            e("s_mov_b64 exec, 1")
            e("s_waitcnt vmcnt(0)")
            g.raw("    buffer_store_dword v13, off, s[36:39], s22 sc1")
            e("s_mov_b64 exec, -1")
            g.label("p1_nofl")
        ls(8)
    def qbar(k):
        g.wait(vm=f"q{QB[k]-1}"); e("s_barrier")
    def qloop(par):
        def rd(s):
            b = RING + 8 * (s % 4)
            va, o = (233, 2048 * s) if s < 24 else (14, XI + 2048 * (s - 24))
            return [f"ds_read_b64_tr_b16 {vr(b,2)}, v{va} offset:{o}", f"ds_read_b64_tr_b16 {vr(b+2,2)}, v{va} offset:{o+512}",
                    f"ds_read_b64_tr_b16 {vr(b+4,2)}, v234", f"ds_read_b64_tr_b16 {vr(b+6,2)}, v234 offset:64", "v_add_u32 v234, v234, v235"]
        bars = {QK * QB[0]: 1, QK * QB[1]: 2} if par == 0 else {QK * QB[1] - OB: 2}
        own = range(0, CE) if par == 0 else range(CE, CT)
        ls(4)
        for s in range(LA):
            for t in rd(s): e(t, tag=f"k{s}")
        for s in range(36):
            b = RING + 8 * (s % 4); z = s == 0
            g.wait(lg=f"k{s}")
            e(f"v_mfma_f32_32x32x16_bf16 {vr(ACC,16)}, {vr(b)}, {vr(X+4*s)}, {'0' if z else vr(ACC,16)}")
            l = rd(s + LA) if s + LA < 36 else []
            if s + LA in bars: qbar(bars[s + LA])
            for t in l[:3]: e(t, tag=f"k{s+LA}")
            e(f"v_mfma_f32_16x16x32_bf16 {vr(ACL)}, {vr(b+4)}, {vr(X+4*s)}, {'0' if z else vr(ACL)}")
            for t in l[3:]: e(t, tag=f"k{s+LA}")
            if s in own or s >= CT:
                m, c = (CSM, CSL) if s < CT else (CS2, CS2 + 4)
                z = s in (own[0], CT)
                e(f"v_mfma_f32_16x16x32_bf16 {vr(m)}, {vr(SEL)}, {vr(b)}, {'0' if z else vr(m)}")
                e(f"v_mfma_f32_16x16x32_bf16 {vr(c)}, {vr(b+4)}, {vr(ONES)}, {'0' if z else vr(c)}")
            if s == FLK: flag(par)
            if s == 1 and par == 1: get_stats(1, 4)
            if s == 3:
                if par == 1: fin_stats(4)
            if s == 6: corr_b(10, 6)
            if s == 7:
                e(f"""
                s_xor_b32 s17, s16, s15
                s_and_b32 s17, s17, 1
                s_lshl_b32 s17, s17, 1
                s_lshr_b32 s18, s16, 1
                s_add_u32 s17, s17, s18
                s_lshl_b32 s18, s17, 11
                v_add_u32 v8, s18, v2
                s_lshl_b32 s18, s17, 9
                v_lshlrev_b32 v4, 2, v1
                v_add_u32 v9, s18, v4
                v_mul_f32 v11, {fhex(CQ)}, v11
                v_lshlrev_b32 v5, 6, v1
                s_mov_b32 s23, {WS_FL}
                s_lshl_b32 s18, s16, 11
                v_add_u32 v12, s18, v2""")
            if s == CT:
                e(f"ds_write_b128 v12, {vr(CSL)} offset:36864", tag="cw")
                e(f"ds_write_b32 v12, v{CSM} offset:{36864+1024}", tag="cw")
                e("v_xor_b32 v12, 2048, v12")
            if s == CT + 2:
                g.wait(lg="cw"); e("s_barrier")
                e(f"ds_read_b128 {vr(CSP)}, v12 offset:36864")
                e(f"ds_read_b32 v{CSP+4}, v12 offset:{36864+1024}")
            if s == PK: e(f"buffer_load_dwordx2 v[254:255], v5, s[36:39], s23 offen sc1")
    g.label("p1_o")
    sc(False)
    e("s_cmp_eq_u32 s16, 3")
    e("s_cbranch_scc1 p1_o3")
    vq = list(g.vmq)
    for half in range(2):
        if half: g.label("p1_o3"); g.lgq = []; g.vmq = list(vq)
        ks = list(range(18 * half, 18 * half + 18)); ko = list(range(18 - 18 * half, 36 - 18 * half))
        for s in ks[:8]: xread(s, 1)
        wq_range(g, NE, 24)
        rest = ks[8:] + ko
        for n, s in enumerate(ks):
            g.wait(lg=f"k{s}")
            dots(s, n == 0)
            for _ in range(2):
                if rest: xread(rest.pop(0), 1)
        assert not rest
        dots_end(1, half)
        if not half: e("s_branch p1_ob")
    g.label("p1_ob")
    g.wait_all(vm=False)
    qbar(1)
    ls(3)
    qloop(1)
    e("s_branch p1_qx")
    g.label("p1_r2")
    g.vmq = list(vq1); g.lgq = list(lq0)
    sphase(0, "S"); sc(False)
    get_stats(0, RING)
    wq_range(g, NE, 24)
    fin_stats(RING)
    g.label("p1_qe")
    g.wait_all(vm=False)
    ls(3)
    qloop(0)
    g.label("p1_qx")
    ls(5)
    g.label("p1_poll")
    e(f"""
    s_waitcnt vmcnt(0)
    v_min_u32 v13, v254, v255
    v_mov_b32 v15, v254
    v_cmp_eq_u32 vcc, 0, v13
    s_cbranch_vccnz p1_pslow""")
    g.label("p1_ok")
    g.vmq = []
    ls(7)
    Q["kvloads"]()
    g.wait_all(vm=False)
    e(f"v_add3_f32 v{CSM}, v{CSM}, v{CS2}, v{CSP+4}".replace("v_add3_f32", "v_add_f32").replace(f", v{CSP+4}", ""))
    e(f"v_add_f32 v{CSM}, v{CSM}, v{CSP+4}")
    corr_a(CSM, RING)
    e(f"v_mfma_f32_32x32x8bf16_1k {vr(ACC,16)}, {vr(RING,2)}, v[6:7], {vr(ACC,16)}")
    for r in range(4): e(f"v_add_f32 v{CSL+r}, v{CSL+r}, v{CS2+4+r}")
    for r in range(4): e(f"v_add_f32 v{CSL+r}, v{CSL+r}, v{CSP+r}")
    for r in range(4): e(f"v_fmac_f32 v{ACL+r}, v{CSL+r}, v10")
    for r in range(4): e(f"v_mul_f32 v{ACL+r}, v{ACL+r}, v11")
    e(f"v_cmp_gt_u32 vcc, 32, v1")
    for r in range(16): e(f"v_mul_f32 v{ACC+r}, v{ACC+r}, v11")
    for u in range(8): e(f"v_cvt_pk_bf16_f32 v{RING+u}, v{ACC+2*u}, v{ACC+2*u+1}")
    for h in range(2): e(f"ds_write_b128 v8, {vr(RING+4*h)} offset:{QX+1024*h}")
    for h in range(2): e(f"v_mul_f32 v{RING+8+h}, v{ACC+8*h}, v{ACC+8*h}")
    for r in range(1, 8):
        for h in range(2): e(f"v_fmac_f32 v{RING+8+h}, v{ACC+8*h+r}, v{ACC+8*h+r}")
    for h in range(2): e(f"v_mov_b32 v{RING+10+h}, v{RING+8+h}")
    for h in range(2): e(f"v_permlane32_swap_b32 v{RING+10+h}, v{RING+8+h}")
    for h in range(2): e(f"v_add_f32 v{RING+8+h}, v{RING+8+h}, v{RING+10+h}")
    for h in range(2):
        for r in range(2): e(f"v_fmac_f32 v{RING+8+h}, v{ACL+2*h+r}, v{ACL+2*h+r}")
    for h in range(2): e(f"v_cvt_pk_bf16_f32 v{RING+10+h}, v{ACL+2*h}, v{ACL+2*h+1}")
    for h in range(2): e(f"v_cndmask_b32 v{RING+8+h}, v{RING+8+h}, v{RING+10+h}, vcc")
    for h in range(2): e(f"ds_write_b32 v9, v{RING+8+h} offset:{QX+8192+256*h}")
    for pp in range(4):
        e(f"""
        s_lshl_b32 s17, s{68+pp}, 11
        v_add_u32 v{RING+12+pp}, s17, v2
        s_lshl_b32 s17, s{68+pp}, 9
        v_add_u32 v{RING+16+pp}, s17, v4""")
    g.wait_all(vm=False)
    e("s_barrier")
    ls(6)
    for q in range(8): e(f"ds_read_b32 v{QL+4*q}, v{RING+16+q//2} offset:{QX+8192+256*(q%2)}")
    for q in range(8): e(f"ds_read_b128 {vr(QM+4*q)}, v{RING+12+q//2} offset:{QX+1024*(q%2)}")

def p1_slow(g):
    e = g.e
    g.label("p1_pslow")
    e(f"""
    s_cmp_eq_u32 s63, 0
    s_cbranch_scc1 p1_ok
    s_sub_u32 s63, s63, 1
    buffer_load_dwordx2 v[254:255], v5, s[36:39], s23 offen sc1
    s_branch p1_poll""")
    for par in range(2):
        g.label(f"p1_mkslow{par}")
        e(f"""
        s_cmp_eq_u32 s63, 0
        s_cbranch_scc1 p1_mkok{par}
        s_sub_u32 s63, s63, 1
        buffer_load_dword v255, off, s[64:67], 0 sc1
        s_waitcnt vmcnt(0)
        s_branch p1_mk{par}""")
```

```python
import sys
from common import *
from ka import k2
def build(out, ks=(k2,)):
    g = Gen()
    info = []
    for k in ks: info.append(k(g))
    hdr = "".join(f"; @launch kernel={n} grid=({gr},1,1) block=(256,1,1) lds={l}\n" for n, gr, l in info)
    txt = hdr + '.amdgcn_target "amdgcn-amd-amdhsa--gfx950"\n.text\n' + g.text() + '.section .rodata,"a"\n'
    for n, gr, l in info: txt += kdesc(n)
    open(out, "w").write(txt)
    print("wrote", out, len(txt), "bytes; nops", g.nops)
if __name__ == "__main__":
    build(sys.argv[1] if len(sys.argv) > 1 else f"cdna_kernels/{NAME}.s")
```
